```python
import torch

def _softmax(x, axis=-1):
    return torch.softmax(x, dim=axis)
def _gelu(x):
    return torch.nn.functional.gelu(x, approximate="tanh")
def _silu(x):
    return torch.nn.functional.silu(x)
def _sigmoid(x):
    return torch.sigmoid(x)
def _layernorm(x, axis=-1, eps=1e-5):
    m = x.mean(dim=axis, keepdim=True)
    v = x.var(dim=axis, keepdim=True, unbiased=False)
    return (x - m) / torch.sqrt(v + eps)
def _scatter_add(tgt, idx, src, axis=0):
    return tgt.clone().index_add_(axis, idx, src)
def _segment_sum(src, seg, n):
    out = torch.zeros((n,) + src.shape[1:], dtype=src.dtype)
    return out.index_add_(0, seg, src)
def _pad(x, pw):
    flat = tuple(v for pair in reversed(pw) for v in pair)
    return torch.nn.functional.pad(x, flat)

kernel_name = 'standalone__weight_only_int_quip__sampling'

def setup_inputs():

    _w = (lambda a: (lambda t: t.to(torch.bfloat16) if t.is_floating_point() else t)(torch.as_tensor(a)))
    B, S, D, F = 16, 4, 1024, 3584
    G = 32 if 32 > 0 else D
    D = (D // G) * G
    ng = D // G
    bits = 3 if 3 > 0 else 4
    qmax = 1 << bits
    qw = torch.randint(0, qmax, (D, F)).to(torch.int32)
    U, _ = (lambda *_a, **_k: torch.linalg.qr(*[torch.as_tensor(_x).float() for _x in _a], **_k))((lambda *s: torch.randn(*s, dtype=torch.bfloat16) * 0.05)(D, D))
    V, _ = (lambda *_a, **_k: torch.linalg.qr(*[torch.as_tensor(_x).float() for _x in _a], **_k))((lambda *s: torch.randn(*s, dtype=torch.bfloat16) * 0.05)(F, F))
    return {
        "x": _w((lambda *s: torch.randn(*s, dtype=torch.bfloat16) * 0.05)(B, S, D)),
        "qw": _w(qw),
        "scales": _w(torch.abs((lambda *s: torch.randn(*s, dtype=torch.bfloat16) * 0.05)(ng, F)) * 0.02 + 0.005),
        "zeros": _w(torch.full((ng, F), qmax / 2.0, dtype=float)),
        "U": _w(U.to(float)),
        "V": _w(V.to(float)),
    }

def reference(x, qw, scales, zeros, U, V):
    B, S, D = x.shape
    ng, F = scales.shape
    G = D // ng
    s = (lambda x, n, axis: torch.repeat_interleave(x, n, dim=axis))(scales, G, axis=0)
    z = (lambda x, n, axis: torch.repeat_interleave(x, n, dim=axis))(zeros, G, axis=0)
    wq = ((lambda x, dt: x.to(dt))(qw, x.dtype) - z) * s
    xr = torch.einsum("bsd,de->bse", x, U)
    h  = torch.einsum("bse,ef->bsf", xr, wq)
    y  = torch.einsum("bsf,fg->bsg", h, V)
    return y
```

```python
NAME = "standalone__weight_only_int_quip__sampling"

HEADER_COMMENT = """; Kernarg layout (72 bytes, ptrs only, base s[0:1]):
"""

SZ_X = 64 * 1024 * 2
SZ_QW = 1024 * 3584 * 4
SZ_SC = 32 * 3584 * 2
SZ_U = 1024 * 1024 * 2
SZ_V = 3584 * 3584 * 2
SZ_OUT = 64 * 3584 * 2
SZ_DBG = 256
SZ_WS = 268435456


class Asm:
    def __init__(self):
        self.lines = []
        self.uid = 0

    def __call__(self, s=""):
        for ln in s.split("\n"):
            ln = ln.rstrip()
            if ln and not ln.endswith(":") and not ln.startswith(".") and not ln.startswith(";"):
                ln = "    " + ln.strip()
            self.lines.append(ln)

    def label(self, base):
        self.uid += 1
        return f"L_{base}_{self.uid}"

    def text(self):
        return "\n".join(self.lines) + "\n"


def vr(b, n=1):
    return f"v{b}" if n == 1 else f"v[{b}:{b + n - 1}]"


def ar(b, n=1):
    return f"a{b}" if n == 1 else f"a[{b}:{b + n - 1}]"


def sr(b, n=1):
    return f"s{b}" if n == 1 else f"s[{b}:{b + n - 1}]"


def srd(a, d, base, size, add=0):
    if add:
        a(f"s_add_u32 s{d}, s{base}, {add:#x}")
        a(f"s_addc_u32 s{d + 1}, s{base + 1}, 0")
    else:
        a(f"s_mov_b32 s{d}, s{base}")
        a(f"s_mov_b32 s{d + 1}, s{base + 1}")
    a(f"s_mov_b32 s{d + 2}, {size:#x}")
    a(f"s_mov_b32 s{d + 3}, 0x20000")


def kernel_begin(a, label):
    a(f".globl {label}")
    a(".p2align 8")
    a(f".type {label},@function")
    a(f"{label}:")


def kernel_desc(a, label, vgpr, sgpr=102, accum=None, extra=""):
    if accum is None:
        accum = (vgpr + 3) // 4 * 4
    a(".p2align 6")
    a(f".amdhsa_kernel {label}")
    a(f"  .amdhsa_next_free_vgpr {vgpr}")
    a(f"  .amdhsa_next_free_sgpr {sgpr}")
    a(f"  .amdhsa_accum_offset {accum}")
    a("  .amdhsa_group_segment_fixed_size 0")
    a("  .amdhsa_kernarg_size 72")
    a("  .amdhsa_user_sgpr_count 2")
    a("  .amdhsa_user_sgpr_kernarg_segment_ptr 1")
    a("  .amdhsa_system_sgpr_workgroup_id_x 1")
    a("  .amdhsa_float_denorm_mode_32 3")
    if extra:
        a(extra)
    a(".end_amdhsa_kernel")
```

```python
import sys, os
from asmlib import *

OPT = dict(stamp=0, u_nt=0, npre=40, spin=0x20000, out_sc1=0, local=1, vb0=0, vb1=0, slp=1, touch=1, abl=0,
           pf_u=1, pf_q=1, pf_v=0, pf_c=6, pf_x=0, pf_h=0, vwin=0, vwin_a=0, pfv_nt=1)
for kv in sys.argv[2:]:
    k, v = kv.split("=")
    assert k in OPT, k
    OPT[k] = int(v, 0)
STAMP = OPT["stamp"]

WS_XR, WS_H, WS_XF, WS_EP, WS_XCC, WS_PART, WS_STAMP = 0, 0x20000, 0x1D0000, 0x1E0000, 0x1F0000, 0x200000, 0x1000000
WS_H_END = WS_H + 64 * 3584 * 2
WS_USED = 0x1100000
LDS_RED = 98304
LDS_X = 114688
LDS_TOTAL = 163840
NWG = 256
NJ2 = 16

a = Asm()
a(HEADER_COMMENT.rstrip())
a(f"; @launch grid=({NWG},1,1) block=(512,1,1) lds={LDS_TOTAL}")
a('.amdgcn_target "amdgcn-amd-amdhsa--gfx950"')
a(".text")

S_W, S_X, S_I = 3, 22, 23
S_SELLO, S_SELHI = 24, 25
S_T0, S_T1, S_T2, S_T3 = 26, 27, 28, 29
S_SPIN, S_HAVE = 30, 31
S_TAGB = 32
S_TAG, S_R2 = 36, 37
S_SO = 40
S_NT3, S_KS3 = 47, 48
S_USTAR = 39
R_A, R_B, R_C, R_WS, R_V, R_DBG = 52, 56, 60, 64, 68, 72
S_VM0, S_VSO = 76, 77
S_ST = 80
V_M, V_G, V_L = 1, 2, 3
V_VOFF = 254
V_PF = 248


def S(r):
    return f"s[{r}:{r + 3}]"


def stamp(idx):
    if not STAMP:
        return
    a("s_memrealtime s[78:79]")
    a("s_waitcnt lgkmcnt(0)")
    a(f"s_mov_b32 s{S_ST + idx}, s78")


def spin_check(exit_label):
    a(f"s_sub_u32 s{S_SPIN}, s{S_SPIN}, 1")
    a(f"s_cmp_lt_i32 s{S_SPIN}, 0")
    a(f"s_cbranch_scc1 {exit_label}")


def sleep():
    if OPT["slp"]:
        a(f"s_sleep {OPT['slp']}")


def dbg_issue(sreg, off):
    a(f"s_load_dword s{sreg}, s[18:19], {off}")


def dbg_finish(sreg, off, cmp_bad):
    l_ok, l_poll = a.label("dok"), a.label("dpoll")
    a("s_waitcnt lgkmcnt(0)")
    a(cmp_bad)
    a(f"s_cbranch_scc0 {l_ok}")
    a(f"v_mov_b32 v249, {off}")
    a(f"s_mov_b32 s{S_SPIN}, {OPT['spin']}")
    a(f"{l_poll}:")
    spin_check(l_ok)
    a(f"buffer_load_dword v250, v249, {S(R_DBG)}, 0 offen sc1")
    a("s_waitcnt vmcnt(0)")
    a(f"v_readfirstlane_b32 s{sreg}, v250")
    a("s_nop 3")
    a(cmp_bad)
    a(f"s_cbranch_scc0 {l_ok}")
    a("s_sleep 4")
    a(f"s_branch {l_poll}")
    a(f"{l_ok}:")


def tag_finish():
    dbg_finish(S_TAG, 0, f"s_cmp_eq_u32 s{S_TAG}, 0")


def r2_finish():
    dbg_finish(S_R2, 128, f"s_cmp_lg_u32 s{S_R2}, {NJ2}")


def publish_xcc():
    if not OPT["local"]:
        return
    l = a.label("xcc")
    a(f"s_cmp_lg_u32 s{S_W}, 7")
    a(f"s_cbranch_scc1 {l}")
    a(f"s_getreg_b32 s{S_T0}, hwreg(HW_REG_XCC_ID, 0, 4)")
    a(f"s_add_u32 s{S_T0}, s{S_T0}, s{S_TAG}")
    a(f"s_lshl_b32 s{S_T1}, s2, 7")
    a(f"s_add_u32 s{S_T1}, s{S_T1}, {WS_XCC}")
    a(f"v_mov_b32 v250, s{S_T0}")
    a(f"v_mov_b32 v251, s{S_T1}")
    a("s_mov_b64 exec, 1")
    a(f"buffer_store_dword v250, v251, {S(R_WS)}, 0 offen sc1")
    a("s_mov_b64 exec, -1")
    a(f"{l}:")


def max_chain(dst, regs):
    a(f"v_max3_u32 v{dst}, v{regs[0]}, v{regs[1]}, v{regs[2]}")
    rest = regs[3:]
    while len(rest) >= 2:
        a(f"v_max3_u32 v{dst}, v{dst}, v{rest[0]}, v{rest[1]}")
        rest = rest[2:]
    if rest:
        a(f"v_max_u32 v{dst}, v{dst}, v{rest[0]}")


def tile_of(si, s_nt, s_ks):
    a(f"s_and_b32 s{s_ks}, s{si}, 3")
    a(f"s_lshr_b32 s{S_T0}, s{si}, 2")
    a(f"s_add_u32 s{S_T0}, s{S_T0}, s{S_USTAR}")
    a(f"s_cmp_ge_u32 s{S_T0}, 14")
    a(f"s_cselect_b32 s{S_T1}, 14, 0")
    a(f"s_sub_u32 s{S_T0}, s{S_T0}, s{S_T1}")
    a(f"s_cmp_ge_u32 s{S_T0}, 7")
    a(f"s_cselect_b32 s{S_T1}, 7, 0")
    a(f"s_sub_u32 s{S_T0}, s{S_T0}, s{S_T1}")
    a(f"s_mul_i32 s{s_nt}, s{S_X}, 7")
    a(f"s_add_u32 s{s_nt}, s{s_nt}, s{S_T0}")


def v_setup():
    a(f"s_add_u32 s{S_USTAR}, s{S_X}, 3")
    a(f"s_and_b32 s{S_USTAR}, s{S_USTAR}, 7")
    a(f"s_add_u32 s{S_USTAR}, s{S_USTAR}, 2")
    tile_of(S_I, S_NT3, S_KS3)
    a(f"s_mul_i32 s{S_T0}, s{S_KS3}, {896 * 7168}")
    a(f"s_mul_i32 s{S_T1}, s{S_W}, {8 * 7168}")
    a(f"s_add_u32 s{S_T0}, s{S_T0}, s{S_T1}")
    a(f"s_lshl_b32 s{S_T1}, s{S_NT3}, 7")
    a(f"s_add_u32 s{S_T0}, s{S_T0}, s{S_T1}")
    a(f"v_bfe_u32 v5, v{V_L}, 1, 2")
    a(f"v_xor_b32 v4, v{V_G}, v5")
    a(f"v_and_b32 v5, 1, v{V_L}")
    a("v_lshlrev_b32 v5, 4, v5")
    a("v_lshl_add_u32 v4, v4, 5, v5")
    a(f"v_lshrrev_b32 v5, 3, v{V_L}")
    a("v_mul_u32_u24 v5, 7168, v5")
    a(f"v_add3_u32 v{V_VOFF}, v4, v5, s{S_T0}")
    a(f"s_lshl_b32 s{S_VM0}, s{S_W}, 10")
    a(f"s_mov_b32 s{S_VSO}, 0")


def v_dma(n, win=0):
    for i in range(n):
        if win and i >= win:
            a(f"s_waitcnt vmcnt({win - 1})")
        a(f"s_mov_b32 m0, s{S_VM0}")
        a(f"s_add_u32 s{S_VM0}, s{S_VM0}, 8192")
        a(f"buffer_load_dwordx4 v{V_VOFF}, {S(R_V)}, s{S_VSO} offen nt lds")
        a(f"s_add_u32 s{S_VSO}, s{S_VSO}, {64 * 7168}")


def v_warm(s_target, s_chunk):
    tile_of(s_target, 44, 45)
    a(f"s_mul_i32 s{S_T0}, s45, 14")
    a(f"s_add_u32 s{S_T0}, s{S_T0}, s{s_chunk}")
    a(f"s_mul_i32 s{S_T0}, s{S_T0}, {64 * 7168}")
    a(f"s_lshl_b32 s{S_T1}, s44, 7")
    a(f"s_add_u32 s{S_T0}, s{S_T0}, s{S_T1}")
    nt = " nt" if OPT["pfv_nt"] else ""
    a(f"buffer_load_dword v{V_PF}, v247, {S(R_V)}, s{S_T0} offen{nt}")


K = f"{NAME}_kernel"
kernel_begin(a, K)
a(f"s_cmp_ge_u32 s2, {NWG}")
a("s_cbranch_scc1 L_end")
a("s_load_dwordx16 s[4:19], s[0:1], 0")
a("s_load_dwordx2 s[20:21], s[0:1], 64")
if STAMP:
    a("s_memrealtime s[78:79]")
a(f"v_and_b32 v{V_M}, 15, v0")
a(f"v_bfe_u32 v{V_G}, v0, 4, 2")
a(f"v_and_b32 v{V_L}, 63, v0")
a("v_lshrrev_b32 v4, 6, v0")
a(f"s_and_b32 s{S_X}, s2, 7")
a(f"v_readfirstlane_b32 s{S_W}, v4")
a(f"s_lshr_b32 s{S_I}, s2, 3")
a(f"s_mov_b32 s{S_SELLO}, 0x05040100")
a(f"s_mov_b32 s{S_SELHI}, 0x07060302")
a(f"s_mov_b32 s{S_HAVE}, 0")
v_setup()
a("s_waitcnt lgkmcnt(0)")
if STAMP:
    for i in range(16):
        a(f"s_mov_b32 s{S_ST + i}, s78")
srd(a, R_WS, 20, WS_USED)
srd(a, R_V, 14, SZ_V)
srd(a, R_DBG, 18, SZ_DBG)
if OPT["pf_u"]:
    a(f"s_cmp_ge_u32 s{S_W}, 2")
    a("s_cbranch_scc1 L_pfu_done")
    a(f"s_cmp_eq_u32 s{S_W}, 1")
    a("s_cbranch_scc1 L_pfu_x")
    srd(a, R_A, 12, SZ_U)
    a(f"s_lshl_b32 s{S_T0}, s{S_I}, 16")
    a(f"s_lshl_b32 s{S_T1}, s{S_X}, 8")
    a(f"s_add_u32 s{S_T0}, s{S_T0}, s{S_T1}")
    a(f"v_lshrrev_b32 v4, 1, v{V_L}")
    a(f"v_and_b32 v5, 1, v{V_L}")
    a("v_lshlrev_b32 v4, 11, v4")
    a("v_lshl_add_u32 v4, v5, 7, v4")
    a(f"buffer_load_dword v{V_PF}, v4, {S(R_A)}, s{S_T0} offen")
    a("s_branch L_pfu_done")
    a("L_pfu_x:")
    srd(a, R_A, 4, SZ_X)
    a(f"s_lshl_b32 s{S_T0}, s{S_I}, 12")
    a(f"v_and_b32 v4, 31, v{V_L}")
    a("v_lshlrev_b32 v4, 7, v4")
    a(f"buffer_load_dword v{V_PF}, v4, {S(R_A)}, s{S_T0} offen")
    a("L_pfu_done:")
a(f"s_cmp_lt_u32 s{S_I}, 14")
a("s_cbranch_scc1 L_roleA")
if OPT["abl"] == 1:
    a("s_branch L_fin")
if OPT["pf_q"]:
    a(f"s_lshr_b32 s{S_T0}, s{S_W}, 1")
    a(f"s_cmp_lg_u32 s{S_T0}, 1")
    a("s_cbranch_scc1 L_pfq_done")
    a(f"s_cmp_lt_u32 s{S_I}, 16")
    a("s_cbranch_scc1 L_pfq_done")
    srd(a, R_A, 6, SZ_QW)
    a(f"s_mul_i32 s{S_T0}, s{S_X}, 14")
    a(f"s_add_u32 s{S_T2}, s{S_T0}, 4")
    a(f"s_and_b32 s{S_T2}, s{S_T2}, -8")
    a(f"s_add_u32 s{S_T2}, s{S_T2}, 3")
    a(f"s_and_b32 s{S_T3}, s{S_W}, 1")
    a(f"s_lshl_b32 s{S_T3}, s{S_T3}, 3")
    a(f"s_add_u32 s{S_T2}, s{S_T2}, s{S_T3}")
    a(f"s_add_u32 s{S_T0}, s{S_T0}, 14")
    a(f"s_cmp_ge_u32 s{S_T2}, s{S_T0}")
    a("s_cbranch_scc1 L_pfq_done")
    a(f"s_sub_u32 s{S_T0}, s{S_I}, 16")
    a(f"s_mul_i32 s{S_T0}, s{S_T0}, {64 * 14336}")
    a(f"s_lshl_b32 s{S_T2}, s{S_T2}, 7")
    a(f"s_add_u32 s{S_T0}, s{S_T0}, s{S_T2}")
    a(f"v_mul_u32_u24 v5, 14336, v{V_L}")
    a(f"buffer_load_dword v{V_PF}, v5, {S(R_A)}, s{S_T0} offen nt")
    a("L_pfq_done:")
a(f"v_mul_u32_u24 v247, 7168, v{V_L}")
a(f"s_cmp_lt_u32 s{S_I}, 30")
a("s_cbranch_scc1 L_p1")

a(f"s_sub_u32 s46, s2, 240")
a(f"s_lshl_b32 s{S_T1}, s46, 3")
a(f"s_add_u32 s{S_T1}, s{S_T1}, s{S_W}")
a(f"s_cmp_lg_u32 s{S_T1}, 15")
a("s_cbranch_scc1 L_jan_notag")
a(f"s_mov_b32 s{S_T2}, {WS_EP}")
a(f"s_load_dword s{S_TAG}, s[20:21], s{S_T2}")
a(f"v_mov_b32 v13, 0")
a(f"v_mov_b32 v14, {WS_EP}")
a("s_waitcnt lgkmcnt(0)")
a(f"s_mul_i32 s{S_TAG}, s{S_TAG}, 0x41C64E6D")
a(f"s_add_u32 s{S_TAG}, s{S_TAG}, 0x3C6EF35F")
a(f"s_or_b32 s{S_TAG}, s{S_TAG}, 0x80000000")
a(f"v_mov_b32 v12, s{S_TAG}")
a("s_mov_b64 exec, 1")
a(f"buffer_store_dword v12, v13, {S(R_DBG)}, 0 offen sc1")
a(f"buffer_store_dword v12, v14, {S(R_WS)}, 0 offen sc1")
a("s_mov_b64 exec, -1")
a("L_jan_notag:")
a("s_barrier")
srd(a, R_A, 20, WS_H_END)
a("v_mov_b32 v8, -1")
a("v_mov_b32 v9, -1")
a("v_mov_b32 v10, -1")
a("v_mov_b32 v11, -1")
a(f"s_lshl_b32 s{S_T2}, s{S_T1}, 12")
a(f"s_add_u32 s{S_T2}, s{S_T2}, {WS_H}")
a(f"v_lshl_add_u32 v4, v{V_L}, 4, s{S_T2}")
for i in range(4):
    o = f" offset:{i * 1024}" if i else ""
    a(f"buffer_store_dwordx4 v[8:11], v4, {S(R_A)}, 0 offen{o} sc1")
a("s_waitcnt vmcnt(0)")
a("s_barrier")
a(f"s_cmp_lg_u32 s{S_W}, 0")
a("s_cbranch_scc1 L_helper2")
a("v_mov_b32 v8, 1")
a("v_mov_b32 v9, 128")
a("s_mov_b64 exec, 1")
a(f"buffer_atomic_add v8, v9, {S(R_DBG)}, 0 offen sc1")
a("s_mov_b64 exec, -1")
a("L_helper2:")
stamp(1)
a("s_branch L_spare")

a("L_p1:")
S_MT, S_NT = 44, 45
srd(a, R_A, 4, SZ_X)
srd(a, R_B, 12, SZ_U)
a(f"s_sub_u32 s{S_T0}, s{S_I}, 14")
a(f"s_and_b32 s{S_MT}, s{S_T0}, 3")
a(f"s_lshr_b32 s{S_T0}, s{S_T0}, 2")
a(f"s_lshl_b32 s{S_NT}, s{S_X}, 2")
a(f"s_add_u32 s{S_NT}, s{S_NT}, s{S_T0}")
a(f"s_lshl_b32 s{S_T0}, s{S_W}, 18")
a(f"s_lshl_b32 s{S_T1}, s{S_NT}, 6")
a(f"s_add_u32 s{S_T0}, s{S_T0}, s{S_T1}")
a(f"v_lshlrev_b32 v5, 14, v{V_G}")
a(f"v_lshl_add_u32 v5, v{V_M}, 2, v5")
a(f"v_add_u32 v5, s{S_T0}, v5")
a(f"s_lshl_b32 s{S_T0}, s{S_MT}, 15")
a(f"s_lshl_b32 s{S_T1}, s{S_W}, 8")
a(f"s_add_u32 s{S_T0}, s{S_T0}, s{S_T1}")
a(f"v_lshlrev_b32 v6, 11, v{V_M}")
a(f"v_lshl_add_u32 v6, v{V_G}, 4, v6")
a(f"v_add_u32 v6, s{S_T0}, v6")
XB, UB, FB, AC = 16, 32, 64, 96
unt = " nt" if OPT["u_nt"] else ""
for s in range(4):
    o = f" offset:{64 * s}" if s else ""
    a(f"buffer_load_dwordx4 {vr(XB + 4 * s, 4)}, v6, {S(R_A)}, 0 offen{o}")
a(f"s_mov_b32 s{S_T0}, 0")
for s in range(4):
    for j in range(8):
        o = " offset:2048" if j & 1 else ""
        a(f"buffer_load_dword v{UB + 8 * s + j}, v5, {S(R_B)}, s{S_T0} offen{o}{unt}")
        if j & 1:
            a(f"s_add_u32 s{S_T0}, s{S_T0}, {4096 if j < 7 else 65536 - 3 * 4096}")
stamp(1)
for s in range(4):
    F = FB + 8 * s
    a(f"s_waitcnt vmcnt({8 * (3 - s)})")
    for p in range(4):
        lo, hi = UB + 8 * s + 2 * p, UB + 8 * s + 2 * p + 1
        a(f"v_perm_b32 v{F + p}, v{hi}, v{lo}, s{S_SELLO}")
        a(f"v_perm_b32 v{F + 4 + p}, v{hi}, v{lo}, s{S_SELHI}")
    a("s_nop 1")
    for c in range(2):
        acc = vr(AC + 4 * c, 4)
        cin = "0" if s == 0 else acc
        a(f"v_mfma_f32_16x16x32_bf16 {acc}, {vr(F + 4 * c, 4)}, {vr(XB + 4 * s, 4)}, {cin}")
stamp(2)
a(f"s_lshl_b32 s{S_T0}, s{S_W}, 11")
a(f"s_add_u32 s{S_T0}, s{S_T0}, {LDS_X}")
a(f"v_lshl_add_u32 v4, v{V_L}, 4, s{S_T0}")
a("s_nop 7")
for c in range(2):
    a(f"ds_write_b128 v4, {vr(AC + 4 * c, 4)} offset:{c * 1024}")
a(f"s_cmp_eq_u32 s{S_W}, 0")
a("s_cbranch_scc1 L_p1_w0")
a("s_waitcnt lgkmcnt(0)")
a("s_barrier")
a("s_branch L_p1_bar2")
a("L_p1_w0:")
dbg_issue(S_TAG, 0)
tag_finish()
a("s_barrier")
for w in range(1, 8):
    a(f"ds_read_b128 {vr(16 + 8 * w, 4)}, v4 offset:{w * 2048}")
    a(f"ds_read_b128 {vr(20 + 8 * w, 4)}, v4 offset:{w * 2048 + 1024}")
a(f"s_lshl_b32 s{S_T0}, s{S_NT}, 2")
a(f"s_add_u32 s{S_T0}, s{S_T0}, s{S_MT}")
a(f"s_lshl_b32 s{S_T1}, s{S_T0}, 7")
a(f"s_add_u32 s{S_T1}, s{S_T1}, {WS_XF}")
a(f"s_lshl_b32 s{S_T0}, s{S_T0}, 10")
a(f"v_lshlrev_b32 v5, 4, v{V_L}")
a(f"v_mov_b32 v12, s{S_TAG}")
a(f"v_mov_b32 v13, s{S_T1}")
for w in range(1, 8):
    a(f"s_waitcnt lgkmcnt({2 * (7 - w)})")
    for i in range(0, 8, 2):
        a(f"v_pk_add_f32 v[{AC + i}:{AC + 1 + i}], v[{AC + i}:{AC + 1 + i}], v[{16 + 8 * w + i}:{17 + 8 * w + i}]")
for r in range(4):
    a(f"v_cvt_pk_bf16_f32 v{8 + r}, v{AC + r}, v{AC + 4 + r}")
a(f"buffer_store_dwordx4 v[8:11], v5, {S(R_WS)}, s{S_T0} offen sc1")
a("s_waitcnt vmcnt(0)")
a("s_mov_b64 exec, 1")
a(f"buffer_store_dword v12, v13, {S(R_WS)}, 0 offen sc1")
a("s_mov_b64 exec, -1")
a("L_p1_bar2:")
a("s_barrier")
stamp(3)
a(f"s_cmp_ge_u32 s{S_I}, 28")
a("s_cbranch_scc1 L_spare")
if OPT["abl"] == 2:
    a("s_branch L_fin")
v_dma(14, OPT["vwin"])
NPFV = 0
if OPT["pf_v"]:
    a(f"s_sub_u32 s46, s{S_I}, 14")
    for rnd in range(2):
        n = min(8, OPT["pf_v"] - 8 * rnd)
        if n <= 0:
            break
        a(f"s_min_u32 s{S_T2}, s{S_W}, {n - 1}")
        a(f"s_sub_u32 s{S_T2}, {13 - 8 * rnd}, s{S_T2}")
        v_warm(46, S_T2)
        NPFV += 1
dbg_issue(S_TAG, 0)
dbg_issue(S_R2, 128)
tag_finish()
r2_finish()
publish_xcc()
a("s_branch L_p3_wait")

a("L_spare:")
if OPT["pf_c"]:
    a(f"s_sub_u32 s46, s{S_I}, 8")
    a(f"s_sub_u32 s{S_T2}, 13, s{S_W}")
    v_warm(46, S_T2)
    a(f"s_sub_u32 s{S_T3}, s{S_I}, 28")
    a(f"s_lshl_b32 s{S_T3}, s{S_T3}, 3")
    a(f"s_add_u32 s38, s{S_T3}, s{S_W}")
    for r in range((OPT["pf_c"] - 1 + 1) // 2):
        a(f"s_add_u32 s{S_T3}, s38, {32 * r}")
        a(f"s_mul_i32 s{S_T2}, s{S_T3}, 4682")
        a(f"s_lshr_b32 s{S_T2}, s{S_T2}, 16")
        a(f"s_mul_i32 s46, s{S_T2}, 14")
        a(f"s_sub_u32 s46, s{S_T3}, s46")
        a(f"s_min_u32 s{S_T2}, s{S_T2}, 13")
        v_warm(46, S_T2)
a("s_branch L_fin")

a("L_roleA:")
if OPT["abl"] == 3:
    a("s_branch L_fin")
S_KS = 44
srd(a, R_A, 6, SZ_QW)
srd(a, R_B, 8, SZ_SC)
srd(a, R_C, 10, SZ_SC)
a(f"s_mul_i32 s{S_KS}, s{S_X}, 14")
a(f"s_add_u32 s{S_KS}, s{S_KS}, s{S_I}")
a(f"s_mul_i32 s{S_T0}, s{S_W}, {128 * 14336}")
a(f"s_lshl_b32 s{S_T1}, s{S_KS}, 7")
a(f"s_add_u32 s{S_T0}, s{S_T0}, s{S_T1}")
a(f"v_bfe_u32 v4, v{V_L}, 3, 2")
a(f"v_lshrrev_b32 v6, 5, v{V_L}")
a("v_lshl_add_u32 v7, v4, 5, v6")
a(f"v_and_b32 v6, 7, v{V_L}")
a("v_mul_u32_u24 v5, 14336, v7")
a("v_lshl_add_u32 v5, v6, 4, v5")
a(f"v_add_u32 v5, s{S_T0}, v5")
a(f"s_mul_i32 s{S_T0}, s{S_W}, {4 * 7168}")
a(f"s_lshl_b32 s{S_T1}, s{S_KS}, 6")
a(f"s_add_u32 s{S_T0}, s{S_T0}, s{S_T1}")
a("v_mul_u32_u24 v4, 7168, v4")
a("v_lshl_add_u32 v4, v6, 3, v4")
SC, ZS, QB, FB, XB, AC = 12, 16, 20, 84, 116, 180
WA, RA = 212, 214
a(f"buffer_load_dwordx2 v[8:9], v4, {S(R_B)}, s{S_T0} offen nt")
a(f"buffer_load_dwordx2 v[10:11], v4, {S(R_C)}, s{S_T0} offen nt")
for i in range(16):
    so = S_SO + (i & 3)
    a(f"s_mov_b32 s{so}, {2 * i * 14336}")
    a(f"buffer_load_dwordx4 {vr(QB + 4 * i, 4)}, v5, {S(R_A)}, s{so} offen nt")
VB0, VB1 = OPT["vb0"], OPT["vb1"]
assert VB0 + VB1 <= 12
v_dma(VB0)
stamp(1)
a(f"s_lshl_b32 s{S_T0}, s{S_W}, 13")
a(f"s_add_u32 s{S_T0}, s{S_T0}, {LDS_RED}")
a("v_lshlrev_b32 v7, 6, v7")
a("v_lshl_add_u32 v7, v6, 3, v7")
a(f"v_add_u32 v{WA}, s{S_T0}, v7")
a(f"v_xor_b32 v{WA + 1}, 32, v{WA}")
a(f"v_bfe_u32 v4, v{V_L}, 2, 2")
a(f"v_lshl_add_u32 v4, v{V_G}, 3, v4")
a("v_lshlrev_b32 v4, 6, v4")
a(f"v_and_b32 v6, 3, v{V_L}")
a("v_lshl_add_u32 v4, v6, 3, v4")
a(f"v_and_b32 v6, 1, v{V_G}")
a("v_lshl_add_u32 v4, v6, 5, v4")
a(f"v_add_u32 v{RA}, s{S_T0}, v4")
a(f"v_xor_b32 v{RA + 1}, 32, v{RA}")
a(f"s_lshl_b32 s{S_T0}, s{S_W}, 14")
a(f"v_lshl_add_u32 v7, v{V_L}, 4, s{S_T0}")
PA = 216
a(f"s_lshl_b32 s{S_T0}, s{S_W}, 11")
a(f"s_add_u32 s{S_T0}, s{S_T0}, {WS_XF}")
a(f"s_add_u32 s{S_T0}, s20, s{S_T0}")
a(f"s_addc_u32 s{S_T1}, s21, 0")
a(f"v_lshlrev_b32 v4, 7, v{V_M}")
a(f"v_mov_b32 v6, s{S_T1}")
a(f"v_add_co_u32 v{PA}, vcc, s{S_T0}, v4")
a("s_nop 1")
a(f"v_addc_co_u32 v{PA + 1}, vcc, 0, v6, vcc")
a("s_mov_b64 exec, 0xffff")
a("s_not_b64 exec, exec")
a(f"v_mov_b32 v{PA}, s18")
a(f"v_mov_b32 v{PA + 1}, s19")
a("s_mov_b64 exec, -1")
a(f"s_waitcnt vmcnt({16 + VB0})")
for d in range(2):
    a(f"v_lshlrev_b32 v{SC + 2 * d}, 16, v{8 + d}")
    a(f"v_and_b32 v{SC + 2 * d + 1}, 0xffff0000, v{8 + d}")
    a(f"v_lshlrev_b32 v{ZS + 2 * d}, 16, v{10 + d}")
    a(f"v_and_b32 v{ZS + 2 * d + 1}, 0xffff0000, v{10 + d}")
for d in range(2):
    a(f"v_pk_mul_f32 v[{ZS + 2 * d}:{ZS + 2 * d + 1}], v[{ZS + 2 * d}:{ZS + 2 * d + 1}], v[{SC + 2 * d}:{SC + 2 * d + 1}]")
for i in range(16):
    q = QB + 4 * i
    a(f"s_waitcnt vmcnt({15 - i + VB0})")
    if i == 15:
        a(f"global_load_dword v5, v[{PA}:{PA + 1}], off sc1")
    for e in range(4):
        a(f"v_cvt_f32_i32 v{q + e}, v{q + e}")
    for d in range(2):
        a(f"v_pk_fma_f32 v[{q + 2 * d}:{q + 2 * d + 1}], v[{q + 2 * d}:{q + 2 * d + 1}], v[{SC + 2 * d}:{SC + 2 * d + 1}], v[{ZS + 2 * d}:{ZS + 2 * d + 1}] neg_lo:[0,0,1] neg_hi:[0,0,1]")
    a(f"v_cvt_pk_bf16_f32 v{q}, v{q}, v{q + 1}")
    a(f"v_cvt_pk_bf16_f32 v{q + 1}, v{q + 2}, v{q + 3}")
    a(f"ds_write_b64 v{WA + ((i >> 2) & 1)}, v[{q}:{q + 1}] offset:{128 * i}")
for s in range(4):
    for c in range(2):
        d = FB + 8 * s + 4 * c
        a(f"ds_read_b64_tr_b16 {vr(d, 2)}, v{RA + c} offset:{2048 * s}")
        a(f"ds_read_b64_tr_b16 {vr(d + 2, 2)}, v{RA + c} offset:{2048 * s + 256}")
stamp(2)
a(f"s_mov_b32 s{S_SPIN}, {OPT['spin']}")
a("L_p2_poll:")
a("s_waitcnt vmcnt(0)")
a(f"v_readlane_b32 s{S_TAG}, v5, 63")
a("s_nop 1")
a(f"v_cmp_ne_u32 vcc, s{S_TAG}, v5")
a(f"s_cmp_eq_u32 s{S_TAG}, 0")
a("s_cbranch_scc1 L_p2_more")
a("s_cbranch_vccz L_p2_go")
a("L_p2_more:")
spin_check("L_p2_go")
sleep()
a(f"global_load_dword v5, v[{PA}:{PA + 1}], off sc1")
a("s_branch L_p2_poll")
a("L_p2_go:")
stamp(13)
for s in range(4):
    a(f"s_mov_b32 s{S_T0}, {s * 4096}")
    for mt in range(4):
        o = f" offset:{mt * 1024}" if mt else ""
        a(f"buffer_load_dwordx4 {vr(XB + 16 * s + 4 * mt, 4)}, v7, {S(R_WS)}, s{S_T0} offen{o} sc1")
v_dma(VB1)
a("s_waitcnt lgkmcnt(0)")
dbg_issue(S_R2, 128)
for s in range(4):
    a(f"s_waitcnt vmcnt({4 * (3 - s) + VB1})")
    for mt in range(4):
        for c in range(2):
            acc = vr(AC + 8 * mt + 4 * c, 4)
            cin = "0" if s == 0 else acc
            a(f"v_mfma_f32_16x16x32_bf16 {acc}, {vr(FB + 8 * s + 4 * c, 4)}, {vr(XB + 16 * s + 4 * mt, 4)}, {cin}")
stamp(3)
a(f"s_lshl_b32 s{S_T0}, s{S_W}, 13")
a(f"s_add_u32 s{S_T0}, s{S_T0}, {LDS_RED}")
a(f"v_lshl_add_u32 v4, v{V_L}, 4, s{S_T0}")
a("s_nop 4")
for i in range(8):
    a(f"ds_write_b128 v4, {vr(AC + 4 * i, 4)} offset:{i * 1024}")
r2_finish()
a("s_barrier")
stamp(11)
a(f"s_cmp_ge_u32 s{S_W}, 4")
a("s_cbranch_scc1 L_p2_bar2")
a(f"s_lshl_b32 s{S_T0}, s{S_W}, 11")
a(f"s_add_u32 s{S_T0}, s{S_T0}, {LDS_RED}")
a(f"v_lshl_add_u32 v4, v{V_L}, 4, s{S_T0}")
for w in range(8):
    a(f"ds_read_b128 {vr(16 + 8 * w, 4)}, v4 offset:{w * 8192}")
    a(f"ds_read_b128 {vr(20 + 8 * w, 4)}, v4 offset:{w * 8192 + 1024}")
a(f"s_lshl_b32 s{S_T0}, s{S_KS}, 12")
a(f"s_lshl_b32 s{S_T1}, s{S_W}, 10")
a(f"s_add_u32 s{S_T0}, s{S_T0}, s{S_T1}")
a(f"s_add_u32 s{S_T0}, s{S_T0}, {WS_H}")
a(f"v_lshlrev_b32 v5, 4, v{V_L}")
for w in range(1, 8):
    a(f"s_waitcnt lgkmcnt({min(15, 2 * (7 - w))})")
    for i in range(0, 8, 2):
        a(f"v_pk_add_f32 v[{16 + i}:{17 + i}], v[{16 + i}:{17 + i}], v[{16 + 8 * w + i}:{17 + 8 * w + i}]")
for r in range(4):
    a(f"v_cvt_pk_bf16_f32 v{8 + r}, v{16 + 2 * r}, v{17 + 2 * r}")
for r in range(4):
    a(f"v_min_u32 v{8 + r}, 0xfffffffe, v{8 + r}")
a(f"buffer_store_dwordx4 v[8:11], v5, {S(R_WS)}, s{S_T0} offen sc1")
a("L_p2_bar2:")
a("s_barrier")
stamp(4)
publish_xcc()
v_dma(14 - VB0 - VB1, OPT["vwin_a"])

a("L_p3_wait:")
VA = 8
HB, AC, PB = 16, 72, 88
NPRE = OPT["npre"]
assert PB + 4 * NPRE <= 248
stamp(5)
a(f"s_lshr_b32 s{S_T0}, s{S_W}, 2")
a(f"s_mul_i32 s{S_T1}, s{S_KS3}, {28 * 4096}")
a(f"s_mul_i32 s{S_T2}, s{S_T0}, {14 * 4096}")
a(f"s_add_u32 s{S_T1}, s{S_T1}, s{S_T2}")
a(f"s_and_b32 s{S_T2}, s{S_W}, 3")
a(f"s_lshl_b32 s{S_T2}, s{S_T2}, 10")
a(f"s_add_u32 s{S_T1}, s{S_T1}, s{S_T2}")
a(f"s_add_u32 s{S_T1}, s{S_T1}, {WS_H}")
a(f"v_min_u32 v4, 13, v{V_L}")
a(f"v_lshl_add_u32 v253, v4, 12, s{S_T1}")
a(f"v_lshl_add_u32 v255, v{V_L}, 4, s{S_T1}")
a(f"buffer_load_dword v4, v253, {S(R_WS)}, 0 offen sc1")
if OPT["touch"]:
    a(f"s_lshl_b32 s{S_T1}, s{S_NT3}, 16")
    a(f"s_lshl_b32 s{S_T2}, s{S_KS3}, 14")
    a(f"s_add_u32 s{S_T1}, s{S_T1}, s{S_T2}")
    a(f"s_lshl_b32 s{S_T2}, s{S_W}, 11")
    a(f"s_add_u32 s{S_T1}, s{S_T1}, s{S_T2}")
    a(f"s_add_u32 s{S_T1}, s{S_T1}, {WS_PART}")
    a(f"v_lshlrev_b32 v5, 7, v{V_M}")
    a(f"buffer_load_dword v{V_PF}, v5, {S(R_WS)}, s{S_T1} offen sc1")
a(f"v_bfe_u32 v5, v{V_L}, 3, 2")
a(f"v_lshrrev_b32 v6, 2, v{V_L}")
a("v_lshlrev_b32 v6, 7, v6")
a(f"v_and_b32 v7, 3, v{V_L}")
a("v_lshl_add_u32 v6, v7, 3, v6")
a(f"s_mul_i32 s{S_T1}, s{S_T0}, {448 * 128}")
a(f"v_add_u32 v6, s{S_T1}, v6")
for tt in range(4):
    a(f"v_xor_b32 v7, {tt}, v5")
    a(f"v_lshl_add_u32 v{VA + tt}, v7, 5, v6")
for i in range(4):
    a(f"s_bfe_u32 s{S_TAGB + i}, s{S_TAG}, {(8 << 16) | (8 * i):#x}")


def frag_read(idx, slot):
    s, tt = divmod(idx, 4)
    d = PB + 4 * slot
    a(f"ds_read_b64_tr_b16 {vr(d, 2)}, v{VA + tt} offset:{s * 4096}")
    a(f"ds_read_b64_tr_b16 {vr(d + 2, 2)}, v{VA + tt} offset:{s * 4096 + 2048}")


def h_loads():
    for s in range(14):
        a(f"s_mov_b32 s{S_SO + (s & 3)}, {s * 4096}")
        a(f"buffer_load_dwordx4 {vr(HB + 4 * s, 4)}, v255, {S(R_WS)}, s{S_SO + (s & 3)} offen sc1")


a(f"s_mov_b32 s{S_SPIN}, {OPT['spin']}")
a(f"s_waitcnt vmcnt({1 if OPT['touch'] else 0})")
a("v_cmp_eq_u32 vcc, -1, v4")
a(f"s_mov_b32 s{S_HAVE}, 0")
a("s_cbranch_vccnz L_p3_notyet")
h_loads()
a(f"s_mov_b32 s{S_HAVE}, 1")
a("L_p3_notyet:")
a("s_barrier")
stamp(6)
for idx in range(NPRE):
    frag_read(idx, idx)
a(f"s_cmp_lg_u32 s{S_HAVE}, 0")
a("s_cbranch_scc1 L_p3_loaded")
a("L_p3_poll:")
a(f"buffer_load_dword v4, v253, {S(R_WS)}, 0 offen sc1")
a("s_waitcnt vmcnt(0)")
a("v_cmp_eq_u32 vcc, -1, v4")
a("s_cbranch_vccz L_p3_again")
spin_check("L_p3_again")
sleep()
a("s_branch L_p3_poll")
a("L_p3_again:")
stamp(7)
h_loads()
a("L_p3_loaded:")
if OPT["local"]:
    a(f"s_and_b32 s{S_T0}, s{S_I}, 28")
    a(f"s_lshr_b32 s{S_T1}, s{S_W}, 2")
    a(f"s_lshl_b32 s{S_T1}, s{S_T1}, 1")
    a(f"s_add_u32 s{S_T0}, s{S_T0}, s{S_T1}")
    a(f"s_lshl_b32 s{S_T0}, s{S_T0}, 3")
    a(f"s_add_u32 s{S_T0}, s{S_T0}, s{S_X}")
    a(f"s_lshl_b32 s{S_T0}, s{S_T0}, 7")
    a(f"s_add_u32 s{S_T0}, s{S_T0}, {WS_XCC}")
    a(f"s_add_u32 s{S_T1}, s{S_T0}, 1024")
    a(f"s_load_dword s50, s[20:21], s{S_T0}")
    a(f"s_load_dword s51, s[20:21], s{S_T1}")
a("s_waitcnt lgkmcnt(0)")
late = list(range(NPRE, 56))
LAG = 4
for idx in range(56):
    s, tt = divmod(idx, 4)
    if tt == 0:
        a(f"s_waitcnt vmcnt({13 - s})")
    if idx >= NPRE:
        rem = 56 - 1 - idx
        a(f"s_waitcnt lgkmcnt({min(15, 2 * rem)})")
    acc = vr(AC + 4 * tt, 4)
    cin = "0" if s == 0 else acc
    a(f"v_mfma_f32_16x16x32_bf16 {acc}, {vr(PB + 4 * (idx % NPRE), 4)}, {vr(HB + 4 * s, 4)}, {cin}")
    if tt == 1:
        regs = list(range(HB + 4 * s, HB + 4 * s + 4))
        if s:
            regs = [5] + regs
        max_chain(5, regs)
    j = idx - LAG
    if 0 <= j < len(late):
        frag_read(late[j], j)
a("v_cmp_eq_u32 vcc, -1, v5")
a("s_cbranch_vccz L_p3_ok")
spin_check("L_p3_ok")
for idx in range(len(late)):
    frag_read(idx, idx)
a("s_branch L_p3_again")
a("L_p3_ok:")
stamp(8)
KEEP, GIVE, IN = 16, 24, 32
a(f"s_lshl_b32 s{S_T0}, s{S_W}, 11")
a(f"s_add_u32 s{S_T0}, s{S_T0}, {LDS_X}")
a(f"v_lshl_add_u32 v4, v{V_L}, 4, s{S_T0}")
a(f"s_xor_b32 s{S_T0}, s{S_T0}, 8192")
a(f"v_lshl_add_u32 v6, v{V_L}, 4, s{S_T0}")
a(f"s_cmp_ge_u32 s{S_W}, 4")
a("s_cbranch_scc1 L_x_hi")
a("s_nop 1")
a(f"ds_write_b128 v4, {vr(AC + 8, 4)}")
a(f"ds_write_b128 v4, {vr(AC + 12, 4)} offset:1024")
for r in range(8):
    a(f"v_mov_b32 v{KEEP + r}, v{AC + r}")
a("s_branch L_x_join")
a("L_x_hi:")
a("s_nop 1")
a(f"ds_write_b128 v4, {vr(AC, 4)}")
a(f"ds_write_b128 v4, {vr(AC + 4, 4)} offset:1024")
for r in range(8):
    a(f"v_mov_b32 v{KEEP + r}, v{AC + 8 + r}")
a("L_x_join:")
a(f"s_lshl_b32 s{S_T0}, s{S_NT3}, 16")
a(f"s_add_u32 s{S_T0}, s{S_T0}, {WS_PART}")
a(f"s_and_b32 s{S_T1}, s{S_W}, 3")
a(f"s_lshl_b32 s{S_T1}, s{S_T1}, 12")
a(f"s_add_u32 s{S_T0}, s{S_T0}, s{S_T1}")
a(f"v_lshl_add_u32 v7, v{V_L}, 4, s{S_T0}")
a(f"s_lshr_b32 s{S_T2}, s{S_W}, 2")
a(f"s_lshl_b32 s{S_T2}, s{S_T2}, 1")
a(f"s_lshl_b32 s{S_T0}, s{S_T2}, 14")
a(f"s_lshl_b32 s{S_T1}, s{S_KS3}, 10")
a(f"s_add_u32 s{S_T0}, s{S_T0}, s{S_T1}")
a(f"s_add_u32 s{S_T1}, s{S_T0}, 16384")
a("v_mov_b32 v12, 0xffffff00")
a("s_waitcnt lgkmcnt(0)")
a("s_barrier")
a(f"ds_read_b128 {vr(GIVE, 4)}, v6")
a(f"ds_read_b128 {vr(GIVE + 4, 4)}, v6 offset:1024")
if OPT["local"]:
    a(f"s_getreg_b32 s{S_T3}, hwreg(HW_REG_XCC_ID, 0, 4)")
    a(f"s_add_u32 s49, s{S_T3}, s{S_TAG}")
a(f"s_sub_u32 s{S_T3}, s{S_KS3}, s{S_T2}")
a("s_waitcnt lgkmcnt(0)")
for i in range(0, 8, 2):
    a(f"v_pk_add_f32 v[{KEEP + i}:{KEEP + i + 1}], v[{KEEP + i}:{KEEP + i + 1}], v[{GIVE + i}:{GIVE + i + 1}]")
for h in range(2):
    l_skip, l_loc = a.label("xs"), a.label("xl")
    a(f"s_cmp_eq_u32 s{S_T3}, {h}")
    a(f"s_cbranch_scc1 {l_skip}")
    for r in range(4):
        a(f"v_and_or_b32 v{GIVE + 4 * h + r}, v{KEEP + 4 * h + r}, v12, s{S_TAGB + r}")
    so = S_T0 if h == 0 else S_T1
    if OPT["local"]:
        a(f"s_cmp_eq_u32 s{50 + h}, s49")
        a(f"s_cbranch_scc1 {l_loc}")
    a(f"buffer_store_dwordx4 {vr(GIVE + 4 * h, 4)}, v7, {S(R_WS)}, s{so} offen sc1")
    if OPT["local"]:
        a(f"s_branch {l_skip}")
        a(f"{l_loc}:")
        a(f"buffer_store_dwordx4 {vr(GIVE + 4 * h, 4)}, v7, {S(R_WS)}, s{so} offen")
    a(f"{l_skip}:")
stamp(12)
a(f"s_cmp_gt_u32 s{S_T3}, 1")
a("s_cbranch_scc1 L_fin")
a(f"s_cmp_eq_u32 s{S_T3}, 0")
a("s_cbranch_scc1 L_own0")
for r in range(4):
    a(f"v_mov_b32 v{KEEP + r}, v{KEEP + 4 + r}")
a("L_own0:")
a(f"s_lshl_b32 s{S_T0}, s{S_KS3}, 14")
for q in range(1, 4):
    a(f"s_add_u32 s{S_T1}, s{S_KS3}, {q}")
    a(f"s_and_b32 s{S_T1}, s{S_T1}, 3")
    a(f"s_lshl_b32 s{S_T1}, s{S_T1}, 10")
    a(f"s_add_u32 s{S_SO + q - 1}, s{S_T0}, s{S_T1}")
srd(a, R_A, 16, SZ_OUT)
a(f"s_and_b32 s{S_T0}, s{S_W}, 3")
a(f"s_mul_i32 s{S_T0}, s{S_T0}, {16 * 7168}")
a(f"s_lshl_b32 s{S_T1}, s{S_NT3}, 7")
a(f"s_add_u32 s{S_T0}, s{S_T0}, s{S_T1}")
a(f"s_lshl_b32 s{S_T1}, s{S_KS3}, 5")
a(f"s_add_u32 s{S_T0}, s{S_T0}, s{S_T1}")
a(f"v_mul_u32_u24 v6, 7168, v{V_M}")
a(f"v_lshl_add_u32 v6, v{V_G}, 3, v6")
a(f"v_add_u32 v6, s{S_T0}, v6")
a(f"s_mov_b32 s{S_SPIN}, {OPT['spin']}")
a("L_p4_poll:")
for q in range(3):
    a(f"buffer_load_dwordx4 {vr(IN + 4 * q, 4)}, v7, {S(R_WS)}, s{S_SO + q} offen sc1")
for q in range(3):
    a(f"s_waitcnt vmcnt({2 - q})")
    for r in range(4):
        a(f"v_xor_b32 v{IN + 4 * q + r}, s{S_TAGB + r}, v{IN + 4 * q + r}")
    if q == 0:
        a(f"v_or3_b32 v5, v{IN}, v{IN + 1}, v{IN + 2}")
        a(f"v_or_b32 v5, v5, v{IN + 3}")
    else:
        a(f"v_or3_b32 v5, v5, v{IN + 4 * q}, v{IN + 4 * q + 1}")
        a(f"v_or3_b32 v5, v5, v{IN + 4 * q + 2}, v{IN + 4 * q + 3}")
a("v_and_b32 v5, 0xff, v5")
a("v_cmp_ne_u32 vcc, 0, v5")
a("s_cbranch_vccz L_p4_ok")
spin_check("L_p4_ok")
sleep()
a("s_branch L_p4_poll")
a("L_p4_ok:")
stamp(9)
for i in range(0, 4, 2):
    a(f"v_pk_add_f32 v[{KEEP + i}:{KEEP + i + 1}], v[{KEEP + i}:{KEEP + i + 1}], v[{IN + i}:{IN + i + 1}]")
    a(f"v_pk_add_f32 v[{IN + 4 + i}:{IN + 5 + i}], v[{IN + 4 + i}:{IN + 5 + i}], v[{IN + 8 + i}:{IN + 9 + i}]")
for i in range(0, 4, 2):
    a(f"v_pk_add_f32 v[{KEEP + i}:{KEEP + i + 1}], v[{KEEP + i}:{KEEP + i + 1}], v[{IN + 4 + i}:{IN + 5 + i}]")
a(f"v_cvt_pk_bf16_f32 v8, v{KEEP}, v{KEEP + 1}")
a(f"v_cvt_pk_bf16_f32 v9, v{KEEP + 2}, v{KEEP + 3}")
osc = " sc1" if OPT["out_sc1"] else ""
a(f"buffer_store_dwordx2 v[8:9], v6, {S(R_A)}, 0 offen{osc}")
a("L_fin:")
if STAMP:
    a("s_waitcnt vmcnt(0)")
    stamp(10)
    a("s_mov_b64 exec, 1")
    a(f"s_lshl_b32 s{S_T0}, s2, 9")
    a(f"s_lshl_b32 s{S_T1}, s{S_W}, 6")
    a(f"s_add_u32 s{S_T0}, s{S_T0}, s{S_T1}")
    a(f"s_add_u32 s{S_T0}, s{S_T0}, {WS_STAMP}")
    a(f"v_mov_b32 v4, s{S_T0}")
    for q in range(4):
        for r in range(4):
            a(f"v_mov_b32 v{8 + 4 * q + r}, s{S_ST + 4 * q + r}")
        a(f"buffer_store_dwordx4 {vr(8 + 4 * q, 4)}, v4, {S(R_WS)}, 0 offen offset:{16 * q}")
a("L_end:")
a("s_endpgm")

a('.section .rodata,"a"')
kernel_desc(a, K, 256, 102)
out = sys.argv[1] if len(sys.argv) > 1 and sys.argv[1] != "-" else f"cdna_kernels/{NAME}.s"
open(out, "w").write(a.text())
print("wrote", out)
```

```python
import sys, os
from asmlib import *

OPT = dict(stamp=0, u_nt=0, npre=40, spin=0x20000, out_sc1=0, local=1, vb0=0, vb1=0, slp=1, touch=1, abl=0,
           pf_u=1, pf_q=1, pf_v=0, pf_c=6, pf_x=0, pf_h=0, vwin=0, vwin_a=0, pfv_nt=1)
for kv in sys.argv[2:]:
    k, v = kv.split("=")
    assert k in OPT, k
    OPT[k] = int(v, 0)
STAMP = OPT["stamp"]

WS_XR, WS_H, WS_XF, WS_EP, WS_XCC, WS_PART, WS_STAMP = 0, 0x20000, 0x1D0000, 0x1E0000, 0x1F0000, 0x200000, 0x1000000
WS_H_END = WS_H + 64 * 3584 * 2
WS_USED = 0x1100000
LDS_RED = 98304
LDS_X = 114688
LDS_TOTAL = 163840
NWG = 256
NJ2 = 16

a = Asm()
a(HEADER_COMMENT.rstrip())
a(f"; @launch grid=({NWG},1,1) block=(512,1,1) lds={LDS_TOTAL}")
a('.amdgcn_target "amdgcn-amd-amdhsa--gfx950"')
a(".text")

S_W, S_X, S_I = 3, 22, 23
S_SELLO, S_SELHI = 24, 25
S_T0, S_T1, S_T2, S_T3 = 26, 27, 28, 29
S_SPIN, S_HAVE = 30, 31
S_TAGB = 32
S_TAG, S_R2 = 36, 37
S_SO = 40
S_NT3, S_KS3 = 47, 48
S_USTAR = 39
R_A, R_B, R_C, R_WS, R_V, R_DBG = 52, 56, 60, 64, 68, 72
S_VM0, S_VSO = 76, 77
S_ST = 80
V_M, V_G, V_L = 1, 2, 3
V_VOFF = 254
V_PF = 248


def S(r):
    return f"s[{r}:{r + 3}]"


def stamp(idx):
    if not STAMP:
        return
    a("s_memrealtime s[78:79]")
    a("s_waitcnt lgkmcnt(0)")
    a(f"s_mov_b32 s{S_ST + idx}, s78")


def spin_check(exit_label):
    a(f"s_sub_u32 s{S_SPIN}, s{S_SPIN}, 1")
    a(f"s_cmp_lt_i32 s{S_SPIN}, 0")
    a(f"s_cbranch_scc1 {exit_label}")


def sleep():
    if OPT["slp"]:
        a(f"s_sleep {OPT['slp']}")


def dbg_issue(sreg, off):
    a(f"s_load_dword s{sreg}, s[18:19], {off}")


def dbg_finish(sreg, off, cmp_bad):
    l_ok, l_poll = a.label("dok"), a.label("dpoll")
    a("s_waitcnt lgkmcnt(0)")
    a(cmp_bad)
    a(f"s_cbranch_scc0 {l_ok}")
    a(f"v_mov_b32 v249, {off}")
    a(f"s_mov_b32 s{S_SPIN}, {OPT['spin']}")
    a(f"{l_poll}:")
    spin_check(l_ok)
    a(f"buffer_load_dword v250, v249, {S(R_DBG)}, 0 offen sc1")
    a("s_waitcnt vmcnt(0)")
    a(f"v_readfirstlane_b32 s{sreg}, v250")
    a("s_nop 3")
    a(cmp_bad)
    a(f"s_cbranch_scc0 {l_ok}")
    a("s_sleep 4")
    a(f"s_branch {l_poll}")
    a(f"{l_ok}:")


def tag_finish():
    dbg_finish(S_TAG, 0, f"s_cmp_eq_u32 s{S_TAG}, 0")


def r2_finish():
    dbg_finish(S_R2, 128, f"s_cmp_lg_u32 s{S_R2}, {NJ2}")


def publish_xcc():
    if not OPT["local"]:
        return
    l = a.label("xcc")
    a(f"s_cmp_lg_u32 s{S_W}, 7")
    a(f"s_cbranch_scc1 {l}")
    a(f"s_getreg_b32 s{S_T0}, hwreg(HW_REG_XCC_ID, 0, 4)")
    a(f"s_add_u32 s{S_T0}, s{S_T0}, s{S_TAG}")
    a(f"s_lshl_b32 s{S_T1}, s2, 7")
    a(f"s_add_u32 s{S_T1}, s{S_T1}, {WS_XCC}")
    a(f"v_mov_b32 v250, s{S_T0}")
    a(f"v_mov_b32 v251, s{S_T1}")
    a("s_mov_b64 exec, 1")
    a(f"buffer_store_dword v250, v251, {S(R_WS)}, 0 offen sc1")
    a("s_mov_b64 exec, -1")
    a(f"{l}:")


def max_chain(dst, regs):
    a(f"v_max3_u32 v{dst}, v{regs[0]}, v{regs[1]}, v{regs[2]}")
    rest = regs[3:]
    while len(rest) >= 2:
        a(f"v_max3_u32 v{dst}, v{dst}, v{rest[0]}, v{rest[1]}")
        rest = rest[2:]
    if rest:
        a(f"v_max_u32 v{dst}, v{dst}, v{rest[0]}")


def tile_of(si, s_nt, s_ks):
    a(f"s_and_b32 s{s_ks}, s{si}, 3")
    a(f"s_lshr_b32 s{S_T0}, s{si}, 2")
    a(f"s_add_u32 s{S_T0}, s{S_T0}, s{S_USTAR}")
    a(f"s_cmp_ge_u32 s{S_T0}, 14")
    a(f"s_cselect_b32 s{S_T1}, 14, 0")
    a(f"s_sub_u32 s{S_T0}, s{S_T0}, s{S_T1}")
    a(f"s_cmp_ge_u32 s{S_T0}, 7")
    a(f"s_cselect_b32 s{S_T1}, 7, 0")
    a(f"s_sub_u32 s{S_T0}, s{S_T0}, s{S_T1}")
    a(f"s_mul_i32 s{s_nt}, s{S_X}, 7")
    a(f"s_add_u32 s{s_nt}, s{s_nt}, s{S_T0}")


def v_setup():
    a(f"s_add_u32 s{S_USTAR}, s{S_X}, 3")
    a(f"s_and_b32 s{S_USTAR}, s{S_USTAR}, 7")
    a(f"s_add_u32 s{S_USTAR}, s{S_USTAR}, 2")
    tile_of(S_I, S_NT3, S_KS3)
    a(f"s_mul_i32 s{S_T0}, s{S_KS3}, {896 * 7168}")
    a(f"s_mul_i32 s{S_T1}, s{S_W}, {8 * 7168}")
    a(f"s_add_u32 s{S_T0}, s{S_T0}, s{S_T1}")
    a(f"s_lshl_b32 s{S_T1}, s{S_NT3}, 7")
    a(f"s_add_u32 s{S_T0}, s{S_T0}, s{S_T1}")
    a(f"v_bfe_u32 v5, v{V_L}, 1, 2")
    a(f"v_xor_b32 v4, v{V_G}, v5")
    a(f"v_and_b32 v5, 1, v{V_L}")
    a("v_lshlrev_b32 v5, 4, v5")
    a("v_lshl_add_u32 v4, v4, 5, v5")
    a(f"v_lshrrev_b32 v5, 3, v{V_L}")
    a("v_mul_u32_u24 v5, 7168, v5")
    a(f"v_add3_u32 v{V_VOFF}, v4, v5, s{S_T0}")
    a(f"s_lshl_b32 s{S_VM0}, s{S_W}, 10")
    a(f"s_mov_b32 s{S_VSO}, 0")


def v_dma(n, win=0):
    for i in range(n):
        if win and i >= win:
            a(f"s_waitcnt vmcnt({win - 1})")
        a(f"s_mov_b32 m0, s{S_VM0}")
        a(f"s_add_u32 s{S_VM0}, s{S_VM0}, 8192")
        a(f"buffer_load_dwordx4 v{V_VOFF}, {S(R_V)}, s{S_VSO} offen nt lds")
        a(f"s_add_u32 s{S_VSO}, s{S_VSO}, {64 * 7168}")


def v_warm(s_target, s_chunk):
    tile_of(s_target, 44, 45)
    a(f"s_mul_i32 s{S_T0}, s45, 14")
    a(f"s_add_u32 s{S_T0}, s{S_T0}, s{s_chunk}")
    a(f"s_mul_i32 s{S_T0}, s{S_T0}, {64 * 7168}")
    a(f"s_lshl_b32 s{S_T1}, s44, 7")
    a(f"s_add_u32 s{S_T0}, s{S_T0}, s{S_T1}")
    nt = " nt" if OPT["pfv_nt"] else ""
    a(f"buffer_load_dword v{V_PF}, v247, {S(R_V)}, s{S_T0} offen{nt}")


K = f"{NAME}_kernel"
kernel_begin(a, K)
a(f"s_cmp_ge_u32 s2, {NWG}")
a("s_cbranch_scc1 L_end")
a("s_load_dwordx16 s[4:19], s[0:1], 0")
a("s_load_dwordx2 s[20:21], s[0:1], 64")
if STAMP:
    a("s_memrealtime s[78:79]")
a(f"v_and_b32 v{V_M}, 15, v0")
a(f"v_bfe_u32 v{V_G}, v0, 4, 2")
a(f"v_and_b32 v{V_L}, 63, v0")
a("v_lshrrev_b32 v4, 6, v0")
a(f"s_and_b32 s{S_X}, s2, 7")
a(f"v_readfirstlane_b32 s{S_W}, v4")
a(f"s_lshr_b32 s{S_I}, s2, 3")
a(f"s_mov_b32 s{S_SELLO}, 0x05040100")
a(f"s_mov_b32 s{S_SELHI}, 0x07060302")
a(f"s_mov_b32 s{S_HAVE}, 0")
v_setup()
a("s_waitcnt lgkmcnt(0)")
if STAMP:
    for i in range(16):
        a(f"s_mov_b32 s{S_ST + i}, s78")
srd(a, R_WS, 20, WS_USED)
srd(a, R_V, 14, SZ_V)
srd(a, R_DBG, 18, SZ_DBG)
if OPT["pf_u"]:
    a(f"s_cmp_ge_u32 s{S_W}, 2")
    a("s_cbranch_scc1 L_pfu_done")
    a(f"s_cmp_eq_u32 s{S_W}, 1")
    a("s_cbranch_scc1 L_pfu_x")
    srd(a, R_A, 12, SZ_U)
    a(f"s_lshl_b32 s{S_T0}, s{S_I}, 16")
    a(f"s_lshl_b32 s{S_T1}, s{S_X}, 8")
    a(f"s_add_u32 s{S_T0}, s{S_T0}, s{S_T1}")
    a(f"v_lshrrev_b32 v4, 1, v{V_L}")
    a(f"v_and_b32 v5, 1, v{V_L}")
    a("v_lshlrev_b32 v4, 11, v4")
    a("v_lshl_add_u32 v4, v5, 7, v4")
    a(f"buffer_load_dword v{V_PF}, v4, {S(R_A)}, s{S_T0} offen")
    a("s_branch L_pfu_done")
    a("L_pfu_x:")
    srd(a, R_A, 4, SZ_X)
    a(f"s_lshl_b32 s{S_T0}, s{S_I}, 12")
    a(f"v_and_b32 v4, 31, v{V_L}")
    a("v_lshlrev_b32 v4, 7, v4")
    a(f"buffer_load_dword v{V_PF}, v4, {S(R_A)}, s{S_T0} offen")
    a("L_pfu_done:")
a(f"s_cmp_lt_u32 s{S_I}, 14")
a("s_cbranch_scc1 L_roleA")
if OPT["abl"] == 1:
    a("s_branch L_fin")
if OPT["pf_q"]:
    a(f"s_lshr_b32 s{S_T0}, s{S_W}, 1")
    a(f"s_cmp_lg_u32 s{S_T0}, 1")
    a("s_cbranch_scc1 L_pfq_done")
    a(f"s_cmp_lt_u32 s{S_I}, 16")
    a("s_cbranch_scc1 L_pfq_done")
    srd(a, R_A, 6, SZ_QW)
    a(f"s_mul_i32 s{S_T0}, s{S_X}, 14")
    a(f"s_add_u32 s{S_T2}, s{S_T0}, 4")
    a(f"s_and_b32 s{S_T2}, s{S_T2}, -8")
    a(f"s_add_u32 s{S_T2}, s{S_T2}, 3")
    a(f"s_and_b32 s{S_T3}, s{S_W}, 1")
    a(f"s_lshl_b32 s{S_T3}, s{S_T3}, 3")
    a(f"s_add_u32 s{S_T2}, s{S_T2}, s{S_T3}")
    a(f"s_add_u32 s{S_T0}, s{S_T0}, 14")
    a(f"s_cmp_ge_u32 s{S_T2}, s{S_T0}")
    a("s_cbranch_scc1 L_pfq_done")
    a(f"s_sub_u32 s{S_T0}, s{S_I}, 16")
    a(f"s_mul_i32 s{S_T0}, s{S_T0}, {64 * 14336}")
    a(f"s_lshl_b32 s{S_T2}, s{S_T2}, 7")
    a(f"s_add_u32 s{S_T0}, s{S_T0}, s{S_T2}")
    a(f"v_mul_u32_u24 v5, 14336, v{V_L}")
    a(f"buffer_load_dword v{V_PF}, v5, {S(R_A)}, s{S_T0} offen nt")
    a("L_pfq_done:")
a(f"v_mul_u32_u24 v247, 7168, v{V_L}")
a(f"s_cmp_lt_u32 s{S_I}, 30")
a("s_cbranch_scc1 L_p1")

a(f"s_sub_u32 s46, s2, 240")
a(f"s_lshl_b32 s{S_T1}, s46, 3")
a(f"s_add_u32 s{S_T1}, s{S_T1}, s{S_W}")
a(f"s_cmp_lg_u32 s{S_T1}, 15")
a("s_cbranch_scc1 L_jan_notag")
a(f"s_mov_b32 s{S_T2}, {WS_EP}")
a(f"s_load_dword s{S_TAG}, s[20:21], s{S_T2}")
a(f"v_mov_b32 v13, 0")
a(f"v_mov_b32 v14, {WS_EP}")
a("s_waitcnt lgkmcnt(0)")
a(f"s_mul_i32 s{S_TAG}, s{S_TAG}, 0x41C64E6D")
a(f"s_add_u32 s{S_TAG}, s{S_TAG}, 0x3C6EF35F")
a(f"s_or_b32 s{S_TAG}, s{S_TAG}, 0x80000000")
a(f"v_mov_b32 v12, s{S_TAG}")
a("s_mov_b64 exec, 1")
a(f"buffer_store_dword v12, v13, {S(R_DBG)}, 0 offen sc1")
a(f"buffer_store_dword v12, v14, {S(R_WS)}, 0 offen sc1")
a("s_mov_b64 exec, -1")
a("L_jan_notag:")
a("s_barrier")
srd(a, R_A, 20, WS_H_END)
a("v_mov_b32 v8, -1")
a("v_mov_b32 v9, -1")
a("v_mov_b32 v10, -1")
a("v_mov_b32 v11, -1")
a(f"s_lshl_b32 s{S_T2}, s{S_T1}, 12")
a(f"s_add_u32 s{S_T2}, s{S_T2}, {WS_H}")
a(f"v_lshl_add_u32 v4, v{V_L}, 4, s{S_T2}")
for i in range(4):
    o = f" offset:{i * 1024}" if i else ""
    a(f"buffer_store_dwordx4 v[8:11], v4, {S(R_A)}, 0 offen{o} sc1")
a("s_waitcnt vmcnt(0)")
a("s_barrier")
a(f"s_cmp_lg_u32 s{S_W}, 0")
a("s_cbranch_scc1 L_helper2")
a("v_mov_b32 v8, 1")
a("v_mov_b32 v9, 128")
a("s_mov_b64 exec, 1")
a(f"buffer_atomic_add v8, v9, {S(R_DBG)}, 0 offen sc1")
a("s_mov_b64 exec, -1")
a("L_helper2:")
stamp(1)
a("s_branch L_spare")

a("L_p1:")
S_MT, S_NT = 44, 45
srd(a, R_A, 4, SZ_X)
srd(a, R_B, 12, SZ_U)
a(f"s_sub_u32 s{S_T0}, s{S_I}, 14")
a(f"s_and_b32 s{S_MT}, s{S_T0}, 3")
a(f"s_lshr_b32 s{S_T0}, s{S_T0}, 2")
a(f"s_lshl_b32 s{S_NT}, s{S_X}, 2")
a(f"s_add_u32 s{S_NT}, s{S_NT}, s{S_T0}")
a(f"s_lshl_b32 s{S_T0}, s{S_W}, 18")
a(f"s_lshl_b32 s{S_T1}, s{S_NT}, 6")
a(f"s_add_u32 s{S_T0}, s{S_T0}, s{S_T1}")
a(f"v_lshlrev_b32 v5, 14, v{V_G}")
a(f"v_lshl_add_u32 v5, v{V_M}, 2, v5")
a(f"v_add_u32 v5, s{S_T0}, v5")
a(f"s_lshl_b32 s{S_T0}, s{S_MT}, 15")
a(f"s_lshl_b32 s{S_T1}, s{S_W}, 8")
a(f"s_add_u32 s{S_T0}, s{S_T0}, s{S_T1}")
a(f"v_lshlrev_b32 v6, 11, v{V_M}")
a(f"v_lshl_add_u32 v6, v{V_G}, 4, v6")
a(f"v_add_u32 v6, s{S_T0}, v6")
XB, UB, FB, AC = 16, 32, 64, 96
unt = " nt" if OPT["u_nt"] else ""
for s in range(4):
    o = f" offset:{64 * s}" if s else ""
    a(f"buffer_load_dwordx4 {vr(XB + 4 * s, 4)}, v6, {S(R_A)}, 0 offen{o}")
a(f"s_mov_b32 s{S_T0}, 0")
for s in range(4):
    for j in range(8):
        o = " offset:2048" if j & 1 else ""
        a(f"buffer_load_dword v{UB + 8 * s + j}, v5, {S(R_B)}, s{S_T0} offen{o}{unt}")
        if j & 1:
            a(f"s_add_u32 s{S_T0}, s{S_T0}, {4096 if j < 7 else 65536 - 3 * 4096}")
stamp(1)
for s in range(4):
    F = FB + 8 * s
    a(f"s_waitcnt vmcnt({8 * (3 - s)})")
    for p in range(4):
        lo, hi = UB + 8 * s + 2 * p, UB + 8 * s + 2 * p + 1
        a(f"v_perm_b32 v{F + p}, v{hi}, v{lo}, s{S_SELLO}")
        a(f"v_perm_b32 v{F + 4 + p}, v{hi}, v{lo}, s{S_SELHI}")
    a("s_nop 1")
    for c in range(2):
        acc = vr(AC + 4 * c, 4)
        cin = "0" if s == 0 else acc
        a(f"v_mfma_f32_16x16x32_bf16 {acc}, {vr(F + 4 * c, 4)}, {vr(XB + 4 * s, 4)}, {cin}")
stamp(2)
a(f"s_lshl_b32 s{S_T0}, s{S_W}, 11")
a(f"s_add_u32 s{S_T0}, s{S_T0}, {LDS_X}")
a(f"v_lshl_add_u32 v4, v{V_L}, 4, s{S_T0}")
a("s_nop 7")
for c in range(2):
    a(f"ds_write_b128 v4, {vr(AC + 4 * c, 4)} offset:{c * 1024}")
a(f"s_cmp_eq_u32 s{S_W}, 0")
a("s_cbranch_scc1 L_p1_w0")
a("s_waitcnt lgkmcnt(0)")
a("s_barrier")
a("s_branch L_p1_bar2")
a("L_p1_w0:")
dbg_issue(S_TAG, 0)
tag_finish()
a("s_barrier")
for w in range(1, 8):
    a(f"ds_read_b128 {vr(16 + 8 * w, 4)}, v4 offset:{w * 2048}")
    a(f"ds_read_b128 {vr(20 + 8 * w, 4)}, v4 offset:{w * 2048 + 1024}")
a(f"s_lshl_b32 s{S_T0}, s{S_NT}, 2")
a(f"s_add_u32 s{S_T0}, s{S_T0}, s{S_MT}")
a(f"s_lshl_b32 s{S_T1}, s{S_T0}, 7")
a(f"s_add_u32 s{S_T1}, s{S_T1}, {WS_XF}")
a(f"s_lshl_b32 s{S_T0}, s{S_T0}, 10")
a(f"v_lshlrev_b32 v5, 4, v{V_L}")
a(f"v_mov_b32 v12, s{S_TAG}")
a(f"v_mov_b32 v13, s{S_T1}")
for w in range(1, 8):
    a(f"s_waitcnt lgkmcnt({2 * (7 - w)})")
    for i in range(0, 8, 2):
        a(f"v_pk_add_f32 v[{AC + i}:{AC + 1 + i}], v[{AC + i}:{AC + 1 + i}], v[{16 + 8 * w + i}:{17 + 8 * w + i}]")
for r in range(4):
    a(f"v_cvt_pk_bf16_f32 v{8 + r}, v{AC + r}, v{AC + 4 + r}")
a(f"buffer_store_dwordx4 v[8:11], v5, {S(R_WS)}, s{S_T0} offen sc1")
a("s_waitcnt vmcnt(0)")
a("s_mov_b64 exec, 1")
a(f"buffer_store_dword v12, v13, {S(R_WS)}, 0 offen sc1")
a("s_mov_b64 exec, -1")
a("L_p1_bar2:")
a("s_barrier")
stamp(3)
a(f"s_cmp_ge_u32 s{S_I}, 28")
a("s_cbranch_scc1 L_spare")
if OPT["abl"] == 2:
    a("s_branch L_fin")
v_dma(14, OPT["vwin"])
NPFV = 0
if OPT["pf_v"]:
    a(f"s_sub_u32 s46, s{S_I}, 14")
    for rnd in range(2):
        n = min(8, OPT["pf_v"] - 8 * rnd)
        if n <= 0:
            break
        a(f"s_min_u32 s{S_T2}, s{S_W}, {n - 1}")
        a(f"s_sub_u32 s{S_T2}, {13 - 8 * rnd}, s{S_T2}")
        v_warm(46, S_T2)
        NPFV += 1
dbg_issue(S_TAG, 0)
dbg_issue(S_R2, 128)
tag_finish()
r2_finish()
publish_xcc()
a("s_branch L_p3_wait")

a("L_spare:")
if OPT["pf_c"]:
    a(f"s_sub_u32 s46, s{S_I}, 8")
    a(f"s_sub_u32 s{S_T2}, 13, s{S_W}")
    v_warm(46, S_T2)
    a(f"s_sub_u32 s{S_T3}, s{S_I}, 28")
    a(f"s_lshl_b32 s{S_T3}, s{S_T3}, 3")
    a(f"s_add_u32 s38, s{S_T3}, s{S_W}")
    for r in range((OPT["pf_c"] - 1 + 1) // 2):
        a(f"s_add_u32 s{S_T3}, s38, {32 * r}")
        a(f"s_mul_i32 s{S_T2}, s{S_T3}, 4682")
        a(f"s_lshr_b32 s{S_T2}, s{S_T2}, 16")
        a(f"s_mul_i32 s46, s{S_T2}, 14")
        a(f"s_sub_u32 s46, s{S_T3}, s46")
        a(f"s_min_u32 s{S_T2}, s{S_T2}, 13")
        v_warm(46, S_T2)
a("s_branch L_fin")

a("L_roleA:")
if OPT["abl"] == 3:
    a("s_branch L_fin")
S_KS = 44
srd(a, R_A, 6, SZ_QW)
srd(a, R_B, 8, SZ_SC)
srd(a, R_C, 10, SZ_SC)
a(f"s_mul_i32 s{S_KS}, s{S_X}, 14")
a(f"s_add_u32 s{S_KS}, s{S_KS}, s{S_I}")
a(f"s_mul_i32 s{S_T0}, s{S_W}, {128 * 14336}")
a(f"s_lshl_b32 s{S_T1}, s{S_KS}, 7")
a(f"s_add_u32 s{S_T0}, s{S_T0}, s{S_T1}")
a(f"v_bfe_u32 v4, v{V_L}, 3, 2")
a(f"v_lshrrev_b32 v6, 5, v{V_L}")
a("v_lshl_add_u32 v7, v4, 5, v6")
a(f"v_and_b32 v6, 7, v{V_L}")
a("v_mul_u32_u24 v5, 14336, v7")
a("v_lshl_add_u32 v5, v6, 4, v5")
a(f"v_add_u32 v5, s{S_T0}, v5")
a(f"s_mul_i32 s{S_T0}, s{S_W}, {4 * 7168}")
a(f"s_lshl_b32 s{S_T1}, s{S_KS}, 6")
a(f"s_add_u32 s{S_T0}, s{S_T0}, s{S_T1}")
a("v_mul_u32_u24 v4, 7168, v4")
a("v_lshl_add_u32 v4, v6, 3, v4")
SC, ZS, QB, FB, XB, AC = 12, 16, 20, 84, 116, 180
WA, RA = 212, 214
a(f"buffer_load_dwordx2 v[8:9], v4, {S(R_B)}, s{S_T0} offen nt")
a(f"buffer_load_dwordx2 v[10:11], v4, {S(R_C)}, s{S_T0} offen nt")
for i in range(16):
    so = S_SO + (i & 3)
    a(f"s_mov_b32 s{so}, {2 * i * 14336}")
    a(f"buffer_load_dwordx4 {vr(QB + 4 * i, 4)}, v5, {S(R_A)}, s{so} offen nt")
VB0, VB1 = OPT["vb0"], OPT["vb1"]
assert VB0 + VB1 <= 12
v_dma(VB0)
stamp(1)
a(f"s_lshl_b32 s{S_T0}, s{S_W}, 13")
a(f"s_add_u32 s{S_T0}, s{S_T0}, {LDS_RED}")
a("v_lshlrev_b32 v7, 6, v7")
a("v_lshl_add_u32 v7, v6, 3, v7")
a(f"v_add_u32 v{WA}, s{S_T0}, v7")
a(f"v_xor_b32 v{WA + 1}, 32, v{WA}")
a(f"v_bfe_u32 v4, v{V_L}, 2, 2")
a(f"v_lshl_add_u32 v4, v{V_G}, 3, v4")
a("v_lshlrev_b32 v4, 6, v4")
a(f"v_and_b32 v6, 3, v{V_L}")
a("v_lshl_add_u32 v4, v6, 3, v4")
a(f"v_and_b32 v6, 1, v{V_G}")
a("v_lshl_add_u32 v4, v6, 5, v4")
a(f"v_add_u32 v{RA}, s{S_T0}, v4")
a(f"v_xor_b32 v{RA + 1}, 32, v{RA}")
a(f"s_lshl_b32 s{S_T0}, s{S_W}, 14")
a(f"v_lshl_add_u32 v7, v{V_L}, 4, s{S_T0}")
PA = 216
a(f"s_lshl_b32 s{S_T0}, s{S_W}, 11")
a(f"s_add_u32 s{S_T0}, s{S_T0}, {WS_XF}")
a(f"s_add_u32 s{S_T0}, s20, s{S_T0}")
a(f"s_addc_u32 s{S_T1}, s21, 0")
a(f"v_lshlrev_b32 v4, 7, v{V_M}")
a(f"v_mov_b32 v6, s{S_T1}")
a(f"v_add_co_u32 v{PA}, vcc, s{S_T0}, v4")
a("s_nop 1")
a(f"v_addc_co_u32 v{PA + 1}, vcc, 0, v6, vcc")
a("s_mov_b64 exec, 0xffff")
a("s_not_b64 exec, exec")
a(f"v_mov_b32 v{PA}, s18")
a(f"v_mov_b32 v{PA + 1}, s19")
a("s_mov_b64 exec, -1")
a(f"s_waitcnt vmcnt({16 + VB0})")
for d in range(2):
    a(f"v_lshlrev_b32 v{SC + 2 * d}, 16, v{8 + d}")
    a(f"v_and_b32 v{SC + 2 * d + 1}, 0xffff0000, v{8 + d}")
    a(f"v_lshlrev_b32 v{ZS + 2 * d}, 16, v{10 + d}")
    a(f"v_and_b32 v{ZS + 2 * d + 1}, 0xffff0000, v{10 + d}")
for d in range(2):
    a(f"v_pk_mul_f32 v[{ZS + 2 * d}:{ZS + 2 * d + 1}], v[{ZS + 2 * d}:{ZS + 2 * d + 1}], v[{SC + 2 * d}:{SC + 2 * d + 1}]")
for i in range(16):
    q = QB + 4 * i
    a(f"s_waitcnt vmcnt({15 - i + VB0})")
    if i == 15:
        a(f"global_load_dword v5, v[{PA}:{PA + 1}], off sc1")
    for e in range(4):
        a(f"v_cvt_f32_i32 v{q + e}, v{q + e}")
    for d in range(2):
        a(f"v_pk_fma_f32 v[{q + 2 * d}:{q + 2 * d + 1}], v[{q + 2 * d}:{q + 2 * d + 1}], v[{SC + 2 * d}:{SC + 2 * d + 1}], v[{ZS + 2 * d}:{ZS + 2 * d + 1}] neg_lo:[0,0,1] neg_hi:[0,0,1]")
    a(f"v_cvt_pk_bf16_f32 v{q}, v{q}, v{q + 1}")
    a(f"v_cvt_pk_bf16_f32 v{q + 1}, v{q + 2}, v{q + 3}")
    a(f"ds_write_b64 v{WA + ((i >> 2) & 1)}, v[{q}:{q + 1}] offset:{128 * i}")
for s in range(4):
    for c in range(2):
        d = FB + 8 * s + 4 * c
        a(f"ds_read_b64_tr_b16 {vr(d, 2)}, v{RA + c} offset:{2048 * s}")
        a(f"ds_read_b64_tr_b16 {vr(d + 2, 2)}, v{RA + c} offset:{2048 * s + 256}")
stamp(2)
a(f"s_mov_b32 s{S_SPIN}, {OPT['spin']}")
a("L_p2_poll:")
a("s_waitcnt vmcnt(0)")
a(f"v_readlane_b32 s{S_TAG}, v5, 63")
a("s_nop 1")
a(f"v_cmp_ne_u32 vcc, s{S_TAG}, v5")
a(f"s_cmp_eq_u32 s{S_TAG}, 0")
a("s_cbranch_scc1 L_p2_more")
a("s_cbranch_vccz L_p2_go")
a("L_p2_more:")
spin_check("L_p2_go")
sleep()
a(f"global_load_dword v5, v[{PA}:{PA + 1}], off sc1")
a("s_branch L_p2_poll")
a("L_p2_go:")
stamp(13)
for s in range(4):
    a(f"s_mov_b32 s{S_T0}, {s * 4096}")
    for mt in range(4):
        o = f" offset:{mt * 1024}" if mt else ""
        a(f"buffer_load_dwordx4 {vr(XB + 16 * s + 4 * mt, 4)}, v7, {S(R_WS)}, s{S_T0} offen{o} sc1")
v_dma(VB1)
a("s_waitcnt lgkmcnt(0)")
dbg_issue(S_R2, 128)
for s in range(4):
    a(f"s_waitcnt vmcnt({4 * (3 - s) + VB1})")
    for mt in range(4):
        for c in range(2):
            acc = vr(AC + 8 * mt + 4 * c, 4)
            cin = "0" if s == 0 else acc
            a(f"v_mfma_f32_16x16x32_bf16 {acc}, {vr(FB + 8 * s + 4 * c, 4)}, {vr(XB + 16 * s + 4 * mt, 4)}, {cin}")
stamp(3)
a(f"s_lshl_b32 s{S_T0}, s{S_W}, 13")
a(f"s_add_u32 s{S_T0}, s{S_T0}, {LDS_RED}")
a(f"v_lshl_add_u32 v4, v{V_L}, 4, s{S_T0}")
a("s_nop 4")
for i in range(8):
    a(f"ds_write_b128 v4, {vr(AC + 4 * i, 4)} offset:{i * 1024}")
r2_finish()
a("s_barrier")
stamp(11)
a(f"s_cmp_ge_u32 s{S_W}, 4")
a("s_cbranch_scc1 L_p2_bar2")
a(f"s_lshl_b32 s{S_T0}, s{S_W}, 11")
a(f"s_add_u32 s{S_T0}, s{S_T0}, {LDS_RED}")
a(f"v_lshl_add_u32 v4, v{V_L}, 4, s{S_T0}")
for w in range(8):
    a(f"ds_read_b128 {vr(16 + 8 * w, 4)}, v4 offset:{w * 8192}")
    a(f"ds_read_b128 {vr(20 + 8 * w, 4)}, v4 offset:{w * 8192 + 1024}")
a(f"s_lshl_b32 s{S_T0}, s{S_KS}, 12")
a(f"s_lshl_b32 s{S_T1}, s{S_W}, 10")
a(f"s_add_u32 s{S_T0}, s{S_T0}, s{S_T1}")
a(f"s_add_u32 s{S_T0}, s{S_T0}, {WS_H}")
a(f"v_lshlrev_b32 v5, 4, v{V_L}")
for w in range(1, 8):
    a(f"s_waitcnt lgkmcnt({min(15, 2 * (7 - w))})")
    for i in range(0, 8, 2):
        a(f"v_pk_add_f32 v[{16 + i}:{17 + i}], v[{16 + i}:{17 + i}], v[{16 + 8 * w + i}:{17 + 8 * w + i}]")
for r in range(4):
    a(f"v_cvt_pk_bf16_f32 v{8 + r}, v{16 + 2 * r}, v{17 + 2 * r}")
for r in range(4):
    a(f"v_min_u32 v{8 + r}, 0xfffffffe, v{8 + r}")
a(f"buffer_store_dwordx4 v[8:11], v5, {S(R_WS)}, s{S_T0} offen sc1")
a("L_p2_bar2:")
a("s_barrier")
stamp(4)
publish_xcc()
v_dma(14 - VB0 - VB1, OPT["vwin_a"])

a("L_p3_wait:")
VA = 8
HB, AC, PB = 16, 72, 88
NPRE = OPT["npre"]
assert PB + 4 * NPRE <= 248
stamp(5)
a(f"s_lshr_b32 s{S_T0}, s{S_W}, 2")
a(f"s_mul_i32 s{S_T1}, s{S_KS3}, {28 * 4096}")
a(f"s_mul_i32 s{S_T2}, s{S_T0}, {14 * 4096}")
a(f"s_add_u32 s{S_T1}, s{S_T1}, s{S_T2}")
a(f"s_and_b32 s{S_T2}, s{S_W}, 3")
a(f"s_lshl_b32 s{S_T2}, s{S_T2}, 10")
a(f"s_add_u32 s{S_T1}, s{S_T1}, s{S_T2}")
a(f"s_add_u32 s{S_T1}, s{S_T1}, {WS_H}")
a(f"v_min_u32 v4, 13, v{V_L}")
a(f"v_lshl_add_u32 v253, v4, 12, s{S_T1}")
a(f"v_lshl_add_u32 v255, v{V_L}, 4, s{S_T1}")
a(f"buffer_load_dword v4, v253, {S(R_WS)}, 0 offen sc1")
if OPT["touch"]:
    a(f"s_lshl_b32 s{S_T1}, s{S_NT3}, 16")
    a(f"s_lshl_b32 s{S_T2}, s{S_KS3}, 14")
    a(f"s_add_u32 s{S_T1}, s{S_T1}, s{S_T2}")
    a(f"s_lshl_b32 s{S_T2}, s{S_W}, 11")
    a(f"s_add_u32 s{S_T1}, s{S_T1}, s{S_T2}")
    a(f"s_add_u32 s{S_T1}, s{S_T1}, {WS_PART}")
    a(f"v_lshlrev_b32 v5, 7, v{V_M}")
    a(f"buffer_load_dword v{V_PF}, v5, {S(R_WS)}, s{S_T1} offen sc1")
a(f"v_bfe_u32 v5, v{V_L}, 3, 2")
a(f"v_lshrrev_b32 v6, 2, v{V_L}")
a("v_lshlrev_b32 v6, 7, v6")
a(f"v_and_b32 v7, 3, v{V_L}")
a("v_lshl_add_u32 v6, v7, 3, v6")
a(f"s_mul_i32 s{S_T1}, s{S_T0}, {448 * 128}")
a(f"v_add_u32 v6, s{S_T1}, v6")
for tt in range(4):
    a(f"v_xor_b32 v7, {tt}, v5")
    a(f"v_lshl_add_u32 v{VA + tt}, v7, 5, v6")
for i in range(4):
    a(f"s_bfe_u32 s{S_TAGB + i}, s{S_TAG}, {(8 << 16) | (8 * i):#x}")


def frag_read(idx, slot):
    s, tt = divmod(idx, 4)
    d = PB + 4 * slot
    a(f"ds_read_b64_tr_b16 {vr(d, 2)}, v{VA + tt} offset:{s * 4096}")
    a(f"ds_read_b64_tr_b16 {vr(d + 2, 2)}, v{VA + tt} offset:{s * 4096 + 2048}")


def h_loads():
    for s in range(14):
        a(f"s_mov_b32 s{S_SO + (s & 3)}, {s * 4096}")
        a(f"buffer_load_dwordx4 {vr(HB + 4 * s, 4)}, v255, {S(R_WS)}, s{S_SO + (s & 3)} offen sc1")


a(f"s_mov_b32 s{S_SPIN}, {OPT['spin']}")
a(f"s_waitcnt vmcnt({1 if OPT['touch'] else 0})")
a("v_cmp_eq_u32 vcc, -1, v4")
a(f"s_mov_b32 s{S_HAVE}, 0")
a("s_cbranch_vccnz L_p3_notyet")
h_loads()
a(f"s_mov_b32 s{S_HAVE}, 1")
a("L_p3_notyet:")
a("s_barrier")
stamp(6)
for idx in range(NPRE):
    frag_read(idx, idx)
a(f"s_cmp_lg_u32 s{S_HAVE}, 0")
a("s_cbranch_scc1 L_p3_loaded")
a("L_p3_poll:")
a(f"buffer_load_dword v4, v253, {S(R_WS)}, 0 offen sc1")
a("s_waitcnt vmcnt(0)")
a("v_cmp_eq_u32 vcc, -1, v4")
a("s_cbranch_vccz L_p3_again")
spin_check("L_p3_again")
sleep()
a("s_branch L_p3_poll")
a("L_p3_again:")
stamp(7)
h_loads()
a("L_p3_loaded:")
if OPT["local"]:
    a(f"s_and_b32 s{S_T0}, s{S_I}, 28")
    a(f"s_lshr_b32 s{S_T1}, s{S_W}, 2")
    a(f"s_lshl_b32 s{S_T1}, s{S_T1}, 1")
    a(f"s_add_u32 s{S_T0}, s{S_T0}, s{S_T1}")
    a(f"s_lshl_b32 s{S_T0}, s{S_T0}, 3")
    a(f"s_add_u32 s{S_T0}, s{S_T0}, s{S_X}")
    a(f"s_lshl_b32 s{S_T0}, s{S_T0}, 7")
    a(f"s_add_u32 s{S_T0}, s{S_T0}, {WS_XCC}")
    a(f"s_add_u32 s{S_T1}, s{S_T0}, 1024")
    a(f"s_load_dword s50, s[20:21], s{S_T0}")
    a(f"s_load_dword s51, s[20:21], s{S_T1}")
a("s_waitcnt lgkmcnt(0)")
late = list(range(NPRE, 56))
LAG = 4
for idx in range(56):
    s, tt = divmod(idx, 4)
    if tt == 0:
        a(f"s_waitcnt vmcnt({13 - s})")
    if idx >= NPRE:
        rem = 56 - 1 - idx
        a(f"s_waitcnt lgkmcnt({min(15, 2 * rem)})")
    acc = vr(AC + 4 * tt, 4)
    cin = "0" if s == 0 else acc
    a(f"v_mfma_f32_16x16x32_bf16 {acc}, {vr(PB + 4 * (idx % NPRE), 4)}, {vr(HB + 4 * s, 4)}, {cin}")
    if tt == 1:
        regs = list(range(HB + 4 * s, HB + 4 * s + 4))
        if s:
            regs = [5] + regs
        max_chain(5, regs)
    j = idx - LAG
    if 0 <= j < len(late):
        frag_read(late[j], j)
a("v_cmp_eq_u32 vcc, -1, v5")
a("s_cbranch_vccz L_p3_ok")
spin_check("L_p3_ok")
for idx in range(len(late)):
    frag_read(idx, idx)
a("s_branch L_p3_again")
a("L_p3_ok:")
stamp(8)
KEEP, GIVE, IN = 16, 24, 32
a(f"s_lshl_b32 s{S_T0}, s{S_W}, 11")
a(f"s_add_u32 s{S_T0}, s{S_T0}, {LDS_X}")
a(f"v_lshl_add_u32 v4, v{V_L}, 4, s{S_T0}")
a(f"s_xor_b32 s{S_T0}, s{S_T0}, 8192")
a(f"v_lshl_add_u32 v6, v{V_L}, 4, s{S_T0}")
a(f"s_cmp_ge_u32 s{S_W}, 4")
a("s_cbranch_scc1 L_x_hi")
a("s_nop 1")
a(f"ds_write_b128 v4, {vr(AC + 8, 4)}")
a(f"ds_write_b128 v4, {vr(AC + 12, 4)} offset:1024")
for r in range(8):
    a(f"v_mov_b32 v{KEEP + r}, v{AC + r}")
a("s_branch L_x_join")
a("L_x_hi:")
a("s_nop 1")
a(f"ds_write_b128 v4, {vr(AC, 4)}")
a(f"ds_write_b128 v4, {vr(AC + 4, 4)} offset:1024")
for r in range(8):
    a(f"v_mov_b32 v{KEEP + r}, v{AC + 8 + r}")
a("L_x_join:")
a(f"s_lshl_b32 s{S_T0}, s{S_NT3}, 16")
a(f"s_add_u32 s{S_T0}, s{S_T0}, {WS_PART}")
a(f"s_and_b32 s{S_T1}, s{S_W}, 3")
a(f"s_lshl_b32 s{S_T1}, s{S_T1}, 12")
a(f"s_add_u32 s{S_T0}, s{S_T0}, s{S_T1}")
a(f"v_lshl_add_u32 v7, v{V_L}, 4, s{S_T0}")
a(f"s_lshr_b32 s{S_T2}, s{S_W}, 2")
a(f"s_lshl_b32 s{S_T2}, s{S_T2}, 1")
a(f"s_lshl_b32 s{S_T0}, s{S_T2}, 14")
a(f"s_lshl_b32 s{S_T1}, s{S_KS3}, 10")
a(f"s_add_u32 s{S_T0}, s{S_T0}, s{S_T1}")
a(f"s_add_u32 s{S_T1}, s{S_T0}, 16384")
a("v_mov_b32 v12, 0xffffff00")
a("s_waitcnt lgkmcnt(0)")
a("s_barrier")
a(f"ds_read_b128 {vr(GIVE, 4)}, v6")
a(f"ds_read_b128 {vr(GIVE + 4, 4)}, v6 offset:1024")
if OPT["local"]:
    a(f"s_getreg_b32 s{S_T3}, hwreg(HW_REG_XCC_ID, 0, 4)")
    a(f"s_add_u32 s49, s{S_T3}, s{S_TAG}")
a(f"s_sub_u32 s{S_T3}, s{S_KS3}, s{S_T2}")
a("s_waitcnt lgkmcnt(0)")
for i in range(0, 8, 2):
    a(f"v_pk_add_f32 v[{KEEP + i}:{KEEP + i + 1}], v[{KEEP + i}:{KEEP + i + 1}], v[{GIVE + i}:{GIVE + i + 1}]")
for h in range(2):
    l_skip, l_loc = a.label("xs"), a.label("xl")
    a(f"s_cmp_eq_u32 s{S_T3}, {h}")
    a(f"s_cbranch_scc1 {l_skip}")
    for r in range(4):
        a(f"v_and_or_b32 v{GIVE + 4 * h + r}, v{KEEP + 4 * h + r}, v12, s{S_TAGB + r}")
    so = S_T0 if h == 0 else S_T1
    if OPT["local"]:
        a(f"s_cmp_eq_u32 s{50 + h}, s49")
        a(f"s_cbranch_scc1 {l_loc}")
    a(f"buffer_store_dwordx4 {vr(GIVE + 4 * h, 4)}, v7, {S(R_WS)}, s{so} offen sc1")
    if OPT["local"]:
        a(f"s_branch {l_skip}")
        a(f"{l_loc}:")
        a(f"buffer_store_dwordx4 {vr(GIVE + 4 * h, 4)}, v7, {S(R_WS)}, s{so} offen")
    a(f"{l_skip}:")
stamp(12)
a(f"s_cmp_gt_u32 s{S_T3}, 1")
a("s_cbranch_scc1 L_fin")
a(f"s_cmp_eq_u32 s{S_T3}, 0")
a("s_cbranch_scc1 L_own0")
for r in range(4):
    a(f"v_mov_b32 v{KEEP + r}, v{KEEP + 4 + r}")
a("L_own0:")
a(f"s_lshl_b32 s{S_T0}, s{S_KS3}, 14")
for q in range(1, 4):
    a(f"s_add_u32 s{S_T1}, s{S_KS3}, {q}")
    a(f"s_and_b32 s{S_T1}, s{S_T1}, 3")
    a(f"s_lshl_b32 s{S_T1}, s{S_T1}, 10")
    a(f"s_add_u32 s{S_SO + q - 1}, s{S_T0}, s{S_T1}")
srd(a, R_A, 16, SZ_OUT)
a(f"s_and_b32 s{S_T0}, s{S_W}, 3")
a(f"s_mul_i32 s{S_T0}, s{S_T0}, {16 * 7168}")
a(f"s_lshl_b32 s{S_T1}, s{S_NT3}, 7")
a(f"s_add_u32 s{S_T0}, s{S_T0}, s{S_T1}")
a(f"s_lshl_b32 s{S_T1}, s{S_KS3}, 5")
a(f"s_add_u32 s{S_T0}, s{S_T0}, s{S_T1}")
a(f"v_mul_u32_u24 v6, 7168, v{V_M}")
a(f"v_lshl_add_u32 v6, v{V_G}, 3, v6")
a(f"v_add_u32 v6, s{S_T0}, v6")
a(f"s_mov_b32 s{S_SPIN}, {OPT['spin']}")
a("L_p4_poll:")
for q in range(3):
    a(f"buffer_load_dwordx4 {vr(IN + 4 * q, 4)}, v7, {S(R_WS)}, s{S_SO + q} offen sc1")
for q in range(3):
    a(f"s_waitcnt vmcnt({2 - q})")
    for r in range(4):
        a(f"v_xor_b32 v{IN + 4 * q + r}, s{S_TAGB + r}, v{IN + 4 * q + r}")
    if q == 0:
        a(f"v_or3_b32 v5, v{IN}, v{IN + 1}, v{IN + 2}")
        a(f"v_or_b32 v5, v5, v{IN + 3}")
    else:
        a(f"v_or3_b32 v5, v5, v{IN + 4 * q}, v{IN + 4 * q + 1}")
        a(f"v_or3_b32 v5, v5, v{IN + 4 * q + 2}, v{IN + 4 * q + 3}")
a("v_and_b32 v5, 0xff, v5")
a("v_cmp_ne_u32 vcc, 0, v5")
a("s_cbranch_vccz L_p4_ok")
spin_check("L_p4_ok")
sleep()
a("s_branch L_p4_poll")
a("L_p4_ok:")
stamp(9)
for i in range(0, 4, 2):
    a(f"v_pk_add_f32 v[{KEEP + i}:{KEEP + i + 1}], v[{KEEP + i}:{KEEP + i + 1}], v[{IN + i}:{IN + i + 1}]")
    a(f"v_pk_add_f32 v[{IN + 4 + i}:{IN + 5 + i}], v[{IN + 4 + i}:{IN + 5 + i}], v[{IN + 8 + i}:{IN + 9 + i}]")
for i in range(0, 4, 2):
    a(f"v_pk_add_f32 v[{KEEP + i}:{KEEP + i + 1}], v[{KEEP + i}:{KEEP + i + 1}], v[{IN + 4 + i}:{IN + 5 + i}]")
a(f"v_cvt_pk_bf16_f32 v8, v{KEEP}, v{KEEP + 1}")
a(f"v_cvt_pk_bf16_f32 v9, v{KEEP + 2}, v{KEEP + 3}")
osc = " sc1" if OPT["out_sc1"] else ""
a(f"buffer_store_dwordx2 v[8:9], v6, {S(R_A)}, 0 offen{osc}")
a("L_fin:")
if STAMP:
    a("s_waitcnt vmcnt(0)")
    stamp(10)
    if STAMP == 2:
        a(f"s_cmp_ge_u32 s{S_I}, 28")
        a("s_cbranch_scc1 L_end")
        a(f"s_and_b32 s{S_T0}, s{S_W}, 3")
        a(f"s_cmp_lg_u32 s{S_T0}, 3")
        a("s_cbranch_scc1 L_end")
        a("s_sleep 127")
        a("s_sleep 127")
        a("s_sleep 127")
        a("s_sleep 127")
        a("s_mov_b64 exec, 1")
        a(f"s_not_b32 s{S_ST + 15}, s{S_ST}")
        a(f"s_cmp_lt_u32 s{S_I}, 14")
        a(f"s_cselect_b32 s{S_T0}, 8, 36")
        a(f"v_mov_b32 v4, s{S_T0}")
        a(f"v_mov_b32 v5, 4")
        a(f"v_mov_b32 v8, s{S_ST + 15}")
        a(f"buffer_atomic_umax v8, v5, {S(R_DBG)}, 0 offen sc1")
        for n, k in enumerate([0, 2, 3, 4, 6, 8, 10]):
            a(f"v_mov_b32 v{9 + n}, s{S_ST + k}")
            a(f"buffer_atomic_umax v{9 + n}, v4, {S(R_DBG)}, 0 offen offset:{4 * n} sc1")
        a("s_branch L_end")
    a("s_mov_b64 exec, 1")
    a(f"s_lshl_b32 s{S_T0}, s2, 9")
    a(f"s_lshl_b32 s{S_T1}, s{S_W}, 6")
    a(f"s_add_u32 s{S_T0}, s{S_T0}, s{S_T1}")
    a(f"s_add_u32 s{S_T0}, s{S_T0}, {WS_STAMP}")
    a(f"v_mov_b32 v4, s{S_T0}")
    for q in range(4):
        for r in range(4):
            a(f"v_mov_b32 v{8 + 4 * q + r}, s{S_ST + 4 * q + r}")
        a(f"buffer_store_dwordx4 {vr(8 + 4 * q, 4)}, v4, {S(R_WS)}, 0 offen offset:{16 * q}")
a("L_end:")
a("s_endpgm")

a('.section .rodata,"a"')
kernel_desc(a, K, 256, 102)
out = sys.argv[1] if len(sys.argv) > 1 and sys.argv[1] != "-" else f"cdna_kernels/{NAME}.s"
open(out, "w").write(a.text())
print("wrote", out)
```

```python
import sys, os
from asmlib import *

OPT = dict(stamp=0, u_nt=0, npre=40, spin=0x20000, out_sc1=0, local=1, vb0=0, vb1=0, slp=1, touch=1, abl=0, pad=0,
           pf_u=1, pf_q=1, pf_v=0, pf_c=6, pf_x=0, pf_h=0, vwin=0, vwin_a=0, pfv_nt=1)
for kv in sys.argv[2:]:
    k, v = kv.split("=")
    assert k in OPT, k
    OPT[k] = int(v, 0)
STAMP = OPT["stamp"]

WS_XR, WS_H, WS_XF, WS_EP, WS_XCC, WS_PART, WS_STAMP = 0, 0x20000, 0x1D0000, 0x1E0000, 0x1F0000, 0x200000, 0x1000000
WS_H_END = WS_H + 64 * 3584 * 2
WS_USED = 0x1100000
LDS_RED = 98304
LDS_X = 114688
LDS_TOTAL = 163840
NWG = 256
NJ2 = 16

a = Asm()
a(HEADER_COMMENT.rstrip())
a(f"; @launch grid=({NWG},1,1) block=(512,1,1) lds={LDS_TOTAL}")
a('.amdgcn_target "amdgcn-amd-amdhsa--gfx950"')
a(".text")

S_W, S_X, S_I = 3, 22, 23
S_SELLO, S_SELHI = 24, 25
S_T0, S_T1, S_T2, S_T3 = 26, 27, 28, 29
S_SPIN, S_HAVE = 30, 31
S_TAGB = 32
S_TAG, S_R2 = 36, 37
S_SO = 40
S_NT3, S_KS3 = 47, 48
S_USTAR = 39
R_A, R_B, R_C, R_WS, R_V, R_DBG = 52, 56, 60, 64, 68, 72
S_VM0, S_VSO = 76, 77
S_ST = 80
V_M, V_G, V_L = 1, 2, 3
V_VOFF = 254
V_PF = 248


def S(r):
    return f"s[{r}:{r + 3}]"


def stamp(idx):
    if not STAMP:
        return
    a("s_memrealtime s[78:79]")
    a("s_waitcnt lgkmcnt(0)")
    a(f"s_mov_b32 s{S_ST + idx}, s78")


def spin_check(exit_label):
    a(f"s_sub_u32 s{S_SPIN}, s{S_SPIN}, 1")
    a(f"s_cmp_lt_i32 s{S_SPIN}, 0")
    a(f"s_cbranch_scc1 {exit_label}")


def sleep():
    if OPT["slp"]:
        a(f"s_sleep {OPT['slp']}")


def dbg_issue(sreg, off):
    a(f"s_load_dword s{sreg}, s[18:19], {off}")


def dbg_finish(sreg, off, cmp_bad):
    l_ok, l_poll = a.label("dok"), a.label("dpoll")
    a("s_waitcnt lgkmcnt(0)")
    a(cmp_bad)
    a(f"s_cbranch_scc0 {l_ok}")
    a(f"v_mov_b32 v249, {off}")
    a(f"s_mov_b32 s{S_SPIN}, {OPT['spin']}")
    a(f"{l_poll}:")
    spin_check(l_ok)
    a(f"buffer_load_dword v250, v249, {S(R_DBG)}, 0 offen sc1")
    a("s_waitcnt vmcnt(0)")
    a(f"v_readfirstlane_b32 s{sreg}, v250")
    a("s_nop 3")
    a(cmp_bad)
    a(f"s_cbranch_scc0 {l_ok}")
    a("s_sleep 4")
    a(f"s_branch {l_poll}")
    a(f"{l_ok}:")


def tag_finish():
    dbg_finish(S_TAG, 0, f"s_cmp_eq_u32 s{S_TAG}, 0")


def r2_finish():
    dbg_finish(S_R2, 128, f"s_cmp_lg_u32 s{S_R2}, {NJ2}")


def publish_xcc():
    if not OPT["local"]:
        return
    l = a.label("xcc")
    a(f"s_cmp_lg_u32 s{S_W}, 7")
    a(f"s_cbranch_scc1 {l}")
    a(f"s_getreg_b32 s{S_T0}, hwreg(HW_REG_XCC_ID, 0, 4)")
    a(f"s_add_u32 s{S_T0}, s{S_T0}, s{S_TAG}")
    a(f"s_lshl_b32 s{S_T1}, s2, 7")
    a(f"s_add_u32 s{S_T1}, s{S_T1}, {WS_XCC}")
    a(f"v_mov_b32 v250, s{S_T0}")
    a(f"v_mov_b32 v251, s{S_T1}")
    a("s_mov_b64 exec, 1")
    a(f"buffer_store_dword v250, v251, {S(R_WS)}, 0 offen sc1")
    a("s_mov_b64 exec, -1")
    a(f"{l}:")


def max_chain(dst, regs):
    a(f"v_max3_u32 v{dst}, v{regs[0]}, v{regs[1]}, v{regs[2]}")
    rest = regs[3:]
    while len(rest) >= 2:
        a(f"v_max3_u32 v{dst}, v{dst}, v{rest[0]}, v{rest[1]}")
        rest = rest[2:]
    if rest:
        a(f"v_max_u32 v{dst}, v{dst}, v{rest[0]}")


def tile_of(si, s_nt, s_ks):
    a(f"s_and_b32 s{s_ks}, s{si}, 3")
    a(f"s_lshr_b32 s{S_T0}, s{si}, 2")
    a(f"s_add_u32 s{S_T0}, s{S_T0}, s{S_USTAR}")
    a(f"s_cmp_ge_u32 s{S_T0}, 14")
    a(f"s_cselect_b32 s{S_T1}, 14, 0")
    a(f"s_sub_u32 s{S_T0}, s{S_T0}, s{S_T1}")
    a(f"s_cmp_ge_u32 s{S_T0}, 7")
    a(f"s_cselect_b32 s{S_T1}, 7, 0")
    a(f"s_sub_u32 s{S_T0}, s{S_T0}, s{S_T1}")
    a(f"s_mul_i32 s{s_nt}, s{S_X}, 7")
    a(f"s_add_u32 s{s_nt}, s{s_nt}, s{S_T0}")


def v_setup():
    a(f"s_add_u32 s{S_USTAR}, s{S_X}, 3")
    a(f"s_and_b32 s{S_USTAR}, s{S_USTAR}, 7")
    a(f"s_add_u32 s{S_USTAR}, s{S_USTAR}, 2")
    tile_of(S_I, S_NT3, S_KS3)
    a(f"s_mul_i32 s{S_T0}, s{S_KS3}, {896 * 7168}")
    a(f"s_mul_i32 s{S_T1}, s{S_W}, {8 * 7168}")
    a(f"s_add_u32 s{S_T0}, s{S_T0}, s{S_T1}")
    a(f"s_lshl_b32 s{S_T1}, s{S_NT3}, 7")
    a(f"s_add_u32 s{S_T0}, s{S_T0}, s{S_T1}")
    a(f"v_bfe_u32 v5, v{V_L}, 1, 2")
    a(f"v_xor_b32 v4, v{V_G}, v5")
    a(f"v_and_b32 v5, 1, v{V_L}")
    a("v_lshlrev_b32 v5, 4, v5")
    a("v_lshl_add_u32 v4, v4, 5, v5")
    a(f"v_lshrrev_b32 v5, 3, v{V_L}")
    a("v_mul_u32_u24 v5, 7168, v5")
    a(f"v_add3_u32 v{V_VOFF}, v4, v5, s{S_T0}")
    a(f"s_lshl_b32 s{S_VM0}, s{S_W}, 10")
    a(f"s_mov_b32 s{S_VSO}, 0")


def v_dma(n, win=0):
    for i in range(n):
        if win and i >= win:
            a(f"s_waitcnt vmcnt({win - 1})")
        a(f"s_mov_b32 m0, s{S_VM0}")
        a(f"s_add_u32 s{S_VM0}, s{S_VM0}, 8192")
        a(f"buffer_load_dwordx4 v{V_VOFF}, {S(R_V)}, s{S_VSO} offen nt lds")
        a(f"s_add_u32 s{S_VSO}, s{S_VSO}, {64 * 7168}")


def v_warm(s_target, s_chunk):
    tile_of(s_target, 44, 45)
    a(f"s_mul_i32 s{S_T0}, s45, 14")
    a(f"s_add_u32 s{S_T0}, s{S_T0}, s{s_chunk}")
    a(f"s_mul_i32 s{S_T0}, s{S_T0}, {64 * 7168}")
    a(f"s_lshl_b32 s{S_T1}, s44, 7")
    a(f"s_add_u32 s{S_T0}, s{S_T0}, s{S_T1}")
    nt = " nt" if OPT["pfv_nt"] else ""
    a(f"buffer_load_dword v{V_PF}, v247, {S(R_V)}, s{S_T0} offen{nt}")


K = f"{NAME}_kernel"
kernel_begin(a, K)
a(f"s_cmp_ge_u32 s2, {NWG}")
a("s_cbranch_scc1 L_end")
a("s_load_dwordx16 s[4:19], s[0:1], 0")
a("s_load_dwordx2 s[20:21], s[0:1], 64")
if STAMP or OPT["pad"]:
    a("s_memrealtime s[78:79]")
a(f"v_and_b32 v{V_M}, 15, v0")
a(f"v_bfe_u32 v{V_G}, v0, 4, 2")
a(f"v_and_b32 v{V_L}, 63, v0")
a("v_lshrrev_b32 v4, 6, v0")
a(f"s_and_b32 s{S_X}, s2, 7")
a(f"v_readfirstlane_b32 s{S_W}, v4")
a(f"s_lshr_b32 s{S_I}, s2, 3")
a(f"s_mov_b32 s{S_SELLO}, 0x05040100")
a(f"s_mov_b32 s{S_SELHI}, 0x07060302")
a(f"s_mov_b32 s{S_HAVE}, 0")
v_setup()
a("s_waitcnt lgkmcnt(0)")
if STAMP:
    for i in range(16):
        a(f"s_mov_b32 s{S_ST + i}, s78")
srd(a, R_WS, 20, WS_USED)
srd(a, R_V, 14, SZ_V)
srd(a, R_DBG, 18, SZ_DBG)
if OPT["pf_u"]:
    a(f"s_cmp_ge_u32 s{S_W}, 2")
    a("s_cbranch_scc1 L_pfu_done")
    a(f"s_cmp_eq_u32 s{S_W}, 1")
    a("s_cbranch_scc1 L_pfu_x")
    srd(a, R_A, 12, SZ_U)
    a(f"s_lshl_b32 s{S_T0}, s{S_I}, 16")
    a(f"s_lshl_b32 s{S_T1}, s{S_X}, 8")
    a(f"s_add_u32 s{S_T0}, s{S_T0}, s{S_T1}")
    a(f"v_lshrrev_b32 v4, 1, v{V_L}")
    a(f"v_and_b32 v5, 1, v{V_L}")
    a("v_lshlrev_b32 v4, 11, v4")
    a("v_lshl_add_u32 v4, v5, 7, v4")
    a(f"buffer_load_dword v{V_PF}, v4, {S(R_A)}, s{S_T0} offen")
    a("s_branch L_pfu_done")
    a("L_pfu_x:")
    srd(a, R_A, 4, SZ_X)
    a(f"s_lshl_b32 s{S_T0}, s{S_I}, 12")
    a(f"v_and_b32 v4, 31, v{V_L}")
    a("v_lshlrev_b32 v4, 7, v4")
    a(f"buffer_load_dword v{V_PF}, v4, {S(R_A)}, s{S_T0} offen")
    a("L_pfu_done:")
a(f"s_cmp_lt_u32 s{S_I}, 14")
a("s_cbranch_scc1 L_roleA")
if OPT["abl"] == 1:
    a("s_branch L_fin")
if OPT["pf_q"]:
    a(f"s_lshr_b32 s{S_T0}, s{S_W}, 1")
    a(f"s_cmp_lg_u32 s{S_T0}, 1")
    a("s_cbranch_scc1 L_pfq_done")
    a(f"s_cmp_lt_u32 s{S_I}, 16")
    a("s_cbranch_scc1 L_pfq_done")
    srd(a, R_A, 6, SZ_QW)
    a(f"s_mul_i32 s{S_T0}, s{S_X}, 14")
    a(f"s_add_u32 s{S_T2}, s{S_T0}, 4")
    a(f"s_and_b32 s{S_T2}, s{S_T2}, -8")
    a(f"s_add_u32 s{S_T2}, s{S_T2}, 3")
    a(f"s_and_b32 s{S_T3}, s{S_W}, 1")
    a(f"s_lshl_b32 s{S_T3}, s{S_T3}, 3")
    a(f"s_add_u32 s{S_T2}, s{S_T2}, s{S_T3}")
    a(f"s_add_u32 s{S_T0}, s{S_T0}, 14")
    a(f"s_cmp_ge_u32 s{S_T2}, s{S_T0}")
    a("s_cbranch_scc1 L_pfq_done")
    a(f"s_sub_u32 s{S_T0}, s{S_I}, 16")
    a(f"s_mul_i32 s{S_T0}, s{S_T0}, {64 * 14336}")
    a(f"s_lshl_b32 s{S_T2}, s{S_T2}, 7")
    a(f"s_add_u32 s{S_T0}, s{S_T0}, s{S_T2}")
    a(f"v_mul_u32_u24 v5, 14336, v{V_L}")
    a(f"buffer_load_dword v{V_PF}, v5, {S(R_A)}, s{S_T0} offen nt")
    a("L_pfq_done:")
a(f"v_mul_u32_u24 v247, 7168, v{V_L}")
a(f"s_cmp_lt_u32 s{S_I}, 30")
a("s_cbranch_scc1 L_p1")

a(f"s_sub_u32 s46, s2, 240")
a(f"s_lshl_b32 s{S_T1}, s46, 3")
a(f"s_add_u32 s{S_T1}, s{S_T1}, s{S_W}")
a(f"s_cmp_lg_u32 s{S_T1}, 15")
a("s_cbranch_scc1 L_jan_notag")
a(f"s_mov_b32 s{S_T2}, {WS_EP}")
a(f"s_load_dword s{S_TAG}, s[20:21], s{S_T2}")
a(f"v_mov_b32 v13, 0")
a(f"v_mov_b32 v14, {WS_EP}")
a("s_waitcnt lgkmcnt(0)")
a(f"s_mul_i32 s{S_TAG}, s{S_TAG}, 0x41C64E6D")
a(f"s_add_u32 s{S_TAG}, s{S_TAG}, 0x3C6EF35F")
a(f"s_or_b32 s{S_TAG}, s{S_TAG}, 0x80000000")
a(f"v_mov_b32 v12, s{S_TAG}")
a("s_mov_b64 exec, 1")
a(f"buffer_store_dword v12, v13, {S(R_DBG)}, 0 offen sc1")
a(f"buffer_store_dword v12, v14, {S(R_WS)}, 0 offen sc1")
a("s_mov_b64 exec, -1")
a("L_jan_notag:")
a("s_barrier")
srd(a, R_A, 20, WS_H_END)
a("v_mov_b32 v8, -1")
a("v_mov_b32 v9, -1")
a("v_mov_b32 v10, -1")
a("v_mov_b32 v11, -1")
a(f"s_lshl_b32 s{S_T2}, s{S_T1}, 12")
a(f"s_add_u32 s{S_T2}, s{S_T2}, {WS_H}")
a(f"v_lshl_add_u32 v4, v{V_L}, 4, s{S_T2}")
for i in range(4):
    o = f" offset:{i * 1024}" if i else ""
    a(f"buffer_store_dwordx4 v[8:11], v4, {S(R_A)}, 0 offen{o} sc1")
a("s_waitcnt vmcnt(0)")
a("s_barrier")
a(f"s_cmp_lg_u32 s{S_W}, 0")
a("s_cbranch_scc1 L_helper2")
a("v_mov_b32 v8, 1")
a("v_mov_b32 v9, 128")
a("s_mov_b64 exec, 1")
a(f"buffer_atomic_add v8, v9, {S(R_DBG)}, 0 offen sc1")
a("s_mov_b64 exec, -1")
a("L_helper2:")
stamp(1)
a("s_branch L_spare")

a("L_p1:")
S_MT, S_NT = 44, 45
srd(a, R_A, 4, SZ_X)
srd(a, R_B, 12, SZ_U)
a(f"s_sub_u32 s{S_T0}, s{S_I}, 14")
a(f"s_and_b32 s{S_MT}, s{S_T0}, 3")
a(f"s_lshr_b32 s{S_T0}, s{S_T0}, 2")
a(f"s_lshl_b32 s{S_NT}, s{S_X}, 2")
a(f"s_add_u32 s{S_NT}, s{S_NT}, s{S_T0}")
a(f"s_lshl_b32 s{S_T0}, s{S_W}, 18")
a(f"s_lshl_b32 s{S_T1}, s{S_NT}, 6")
a(f"s_add_u32 s{S_T0}, s{S_T0}, s{S_T1}")
a(f"v_lshlrev_b32 v5, 14, v{V_G}")
a(f"v_lshl_add_u32 v5, v{V_M}, 2, v5")
a(f"v_add_u32 v5, s{S_T0}, v5")
a(f"s_lshl_b32 s{S_T0}, s{S_MT}, 15")
a(f"s_lshl_b32 s{S_T1}, s{S_W}, 8")
a(f"s_add_u32 s{S_T0}, s{S_T0}, s{S_T1}")
a(f"v_lshlrev_b32 v6, 11, v{V_M}")
a(f"v_lshl_add_u32 v6, v{V_G}, 4, v6")
a(f"v_add_u32 v6, s{S_T0}, v6")
XB, UB, FB, AC = 16, 32, 64, 96
unt = " nt" if OPT["u_nt"] else ""
for s in range(4):
    o = f" offset:{64 * s}" if s else ""
    a(f"buffer_load_dwordx4 {vr(XB + 4 * s, 4)}, v6, {S(R_A)}, 0 offen{o}")
a(f"s_mov_b32 s{S_T0}, 0")
for s in range(4):
    for j in range(8):
        o = " offset:2048" if j & 1 else ""
        a(f"buffer_load_dword v{UB + 8 * s + j}, v5, {S(R_B)}, s{S_T0} offen{o}{unt}")
        if j & 1:
            a(f"s_add_u32 s{S_T0}, s{S_T0}, {4096 if j < 7 else 65536 - 3 * 4096}")
stamp(1)
for s in range(4):
    F = FB + 8 * s
    a(f"s_waitcnt vmcnt({8 * (3 - s)})")
    for p in range(4):
        lo, hi = UB + 8 * s + 2 * p, UB + 8 * s + 2 * p + 1
        a(f"v_perm_b32 v{F + p}, v{hi}, v{lo}, s{S_SELLO}")
        a(f"v_perm_b32 v{F + 4 + p}, v{hi}, v{lo}, s{S_SELHI}")
    a("s_nop 1")
    for c in range(2):
        acc = vr(AC + 4 * c, 4)
        cin = "0" if s == 0 else acc
        a(f"v_mfma_f32_16x16x32_bf16 {acc}, {vr(F + 4 * c, 4)}, {vr(XB + 4 * s, 4)}, {cin}")
stamp(2)
a(f"s_lshl_b32 s{S_T0}, s{S_W}, 11")
a(f"s_add_u32 s{S_T0}, s{S_T0}, {LDS_X}")
a(f"v_lshl_add_u32 v4, v{V_L}, 4, s{S_T0}")
a("s_nop 7")
for c in range(2):
    a(f"ds_write_b128 v4, {vr(AC + 4 * c, 4)} offset:{c * 1024}")
a(f"s_cmp_eq_u32 s{S_W}, 0")
a("s_cbranch_scc1 L_p1_w0")
a("s_waitcnt lgkmcnt(0)")
a("s_barrier")
a("s_branch L_p1_bar2")
a("L_p1_w0:")
dbg_issue(S_TAG, 0)
tag_finish()
a("s_barrier")
for w in range(1, 8):
    a(f"ds_read_b128 {vr(16 + 8 * w, 4)}, v4 offset:{w * 2048}")
    a(f"ds_read_b128 {vr(20 + 8 * w, 4)}, v4 offset:{w * 2048 + 1024}")
a(f"s_lshl_b32 s{S_T0}, s{S_NT}, 2")
a(f"s_add_u32 s{S_T0}, s{S_T0}, s{S_MT}")
a(f"s_lshl_b32 s{S_T1}, s{S_T0}, 7")
a(f"s_add_u32 s{S_T1}, s{S_T1}, {WS_XF}")
a(f"s_lshl_b32 s{S_T0}, s{S_T0}, 10")
a(f"v_lshlrev_b32 v5, 4, v{V_L}")
a(f"v_mov_b32 v12, s{S_TAG}")
a(f"v_mov_b32 v13, s{S_T1}")
for w in range(1, 8):
    a(f"s_waitcnt lgkmcnt({2 * (7 - w)})")
    for i in range(0, 8, 2):
        a(f"v_pk_add_f32 v[{AC + i}:{AC + 1 + i}], v[{AC + i}:{AC + 1 + i}], v[{16 + 8 * w + i}:{17 + 8 * w + i}]")
for r in range(4):
    a(f"v_cvt_pk_bf16_f32 v{8 + r}, v{AC + r}, v{AC + 4 + r}")
a(f"buffer_store_dwordx4 v[8:11], v5, {S(R_WS)}, s{S_T0} offen sc1")
a("s_waitcnt vmcnt(0)")
a("s_mov_b64 exec, 1")
a(f"buffer_store_dword v12, v13, {S(R_WS)}, 0 offen sc1")
a("s_mov_b64 exec, -1")
a("L_p1_bar2:")
a("s_barrier")
stamp(3)
a(f"s_cmp_ge_u32 s{S_I}, 28")
a("s_cbranch_scc1 L_spare")
if OPT["abl"] == 2:
    a("s_branch L_fin")
v_dma(14, OPT["vwin"])
NPFV = 0
if OPT["pf_v"]:
    a(f"s_sub_u32 s46, s{S_I}, 14")
    for rnd in range(2):
        n = min(8, OPT["pf_v"] - 8 * rnd)
        if n <= 0:
            break
        a(f"s_min_u32 s{S_T2}, s{S_W}, {n - 1}")
        a(f"s_sub_u32 s{S_T2}, {13 - 8 * rnd}, s{S_T2}")
        v_warm(46, S_T2)
        NPFV += 1
dbg_issue(S_TAG, 0)
dbg_issue(S_R2, 128)
tag_finish()
r2_finish()
publish_xcc()
a("s_branch L_p3_wait")

a("L_spare:")
if OPT["pf_c"]:
    a(f"s_sub_u32 s46, s{S_I}, 8")
    a(f"s_sub_u32 s{S_T2}, 13, s{S_W}")
    v_warm(46, S_T2)
    a(f"s_sub_u32 s{S_T3}, s{S_I}, 28")
    a(f"s_lshl_b32 s{S_T3}, s{S_T3}, 3")
    a(f"s_add_u32 s38, s{S_T3}, s{S_W}")
    for r in range((OPT["pf_c"] - 1 + 1) // 2):
        a(f"s_add_u32 s{S_T3}, s38, {32 * r}")
        a(f"s_mul_i32 s{S_T2}, s{S_T3}, 4682")
        a(f"s_lshr_b32 s{S_T2}, s{S_T2}, 16")
        a(f"s_mul_i32 s46, s{S_T2}, 14")
        a(f"s_sub_u32 s46, s{S_T3}, s46")
        a(f"s_min_u32 s{S_T2}, s{S_T2}, 13")
        v_warm(46, S_T2)
a("s_branch L_fin")

a("L_roleA:")
if OPT["abl"] == 3:
    a("s_branch L_fin")
S_KS = 44
srd(a, R_A, 6, SZ_QW)
srd(a, R_B, 8, SZ_SC)
srd(a, R_C, 10, SZ_SC)
a(f"s_mul_i32 s{S_KS}, s{S_X}, 14")
a(f"s_add_u32 s{S_KS}, s{S_KS}, s{S_I}")
a(f"s_mul_i32 s{S_T0}, s{S_W}, {128 * 14336}")
a(f"s_lshl_b32 s{S_T1}, s{S_KS}, 7")
a(f"s_add_u32 s{S_T0}, s{S_T0}, s{S_T1}")
a(f"v_bfe_u32 v4, v{V_L}, 3, 2")
a(f"v_lshrrev_b32 v6, 5, v{V_L}")
a("v_lshl_add_u32 v7, v4, 5, v6")
a(f"v_and_b32 v6, 7, v{V_L}")
a("v_mul_u32_u24 v5, 14336, v7")
a("v_lshl_add_u32 v5, v6, 4, v5")
a(f"v_add_u32 v5, s{S_T0}, v5")
a(f"s_mul_i32 s{S_T0}, s{S_W}, {4 * 7168}")
a(f"s_lshl_b32 s{S_T1}, s{S_KS}, 6")
a(f"s_add_u32 s{S_T0}, s{S_T0}, s{S_T1}")
a("v_mul_u32_u24 v4, 7168, v4")
a("v_lshl_add_u32 v4, v6, 3, v4")
SC, ZS, QB, FB, XB, AC = 12, 16, 20, 84, 116, 180
WA, RA = 212, 214
a(f"buffer_load_dwordx2 v[8:9], v4, {S(R_B)}, s{S_T0} offen nt")
a(f"buffer_load_dwordx2 v[10:11], v4, {S(R_C)}, s{S_T0} offen nt")
for i in range(16):
    so = S_SO + (i & 3)
    a(f"s_mov_b32 s{so}, {2 * i * 14336}")
    a(f"buffer_load_dwordx4 {vr(QB + 4 * i, 4)}, v5, {S(R_A)}, s{so} offen nt")
VB0, VB1 = OPT["vb0"], OPT["vb1"]
assert VB0 + VB1 <= 12
v_dma(VB0)
stamp(1)
a(f"s_lshl_b32 s{S_T0}, s{S_W}, 13")
a(f"s_add_u32 s{S_T0}, s{S_T0}, {LDS_RED}")
a("v_lshlrev_b32 v7, 6, v7")
a("v_lshl_add_u32 v7, v6, 3, v7")
a(f"v_add_u32 v{WA}, s{S_T0}, v7")
a(f"v_xor_b32 v{WA + 1}, 32, v{WA}")
a(f"v_bfe_u32 v4, v{V_L}, 2, 2")
a(f"v_lshl_add_u32 v4, v{V_G}, 3, v4")
a("v_lshlrev_b32 v4, 6, v4")
a(f"v_and_b32 v6, 3, v{V_L}")
a("v_lshl_add_u32 v4, v6, 3, v4")
a(f"v_and_b32 v6, 1, v{V_G}")
a("v_lshl_add_u32 v4, v6, 5, v4")
a(f"v_add_u32 v{RA}, s{S_T0}, v4")
a(f"v_xor_b32 v{RA + 1}, 32, v{RA}")
a(f"s_lshl_b32 s{S_T0}, s{S_W}, 14")
a(f"v_lshl_add_u32 v7, v{V_L}, 4, s{S_T0}")
PA = 216
a(f"s_lshl_b32 s{S_T0}, s{S_W}, 11")
a(f"s_add_u32 s{S_T0}, s{S_T0}, {WS_XF}")
a(f"s_add_u32 s{S_T0}, s20, s{S_T0}")
a(f"s_addc_u32 s{S_T1}, s21, 0")
a(f"v_lshlrev_b32 v4, 7, v{V_M}")
a(f"v_mov_b32 v6, s{S_T1}")
a(f"v_add_co_u32 v{PA}, vcc, s{S_T0}, v4")
a("s_nop 1")
a(f"v_addc_co_u32 v{PA + 1}, vcc, 0, v6, vcc")
a("s_mov_b64 exec, 0xffff")
a("s_not_b64 exec, exec")
a(f"v_mov_b32 v{PA}, s18")
a(f"v_mov_b32 v{PA + 1}, s19")
a("s_mov_b64 exec, -1")
a(f"s_waitcnt vmcnt({16 + VB0})")
for d in range(2):
    a(f"v_lshlrev_b32 v{SC + 2 * d}, 16, v{8 + d}")
    a(f"v_and_b32 v{SC + 2 * d + 1}, 0xffff0000, v{8 + d}")
    a(f"v_lshlrev_b32 v{ZS + 2 * d}, 16, v{10 + d}")
    a(f"v_and_b32 v{ZS + 2 * d + 1}, 0xffff0000, v{10 + d}")
for d in range(2):
    a(f"v_pk_mul_f32 v[{ZS + 2 * d}:{ZS + 2 * d + 1}], v[{ZS + 2 * d}:{ZS + 2 * d + 1}], v[{SC + 2 * d}:{SC + 2 * d + 1}]")
for i in range(16):
    q = QB + 4 * i
    a(f"s_waitcnt vmcnt({15 - i + VB0})")
    if i == 15:
        a(f"global_load_dword v5, v[{PA}:{PA + 1}], off sc1")
    for e in range(4):
        a(f"v_cvt_f32_i32 v{q + e}, v{q + e}")
    for d in range(2):
        a(f"v_pk_fma_f32 v[{q + 2 * d}:{q + 2 * d + 1}], v[{q + 2 * d}:{q + 2 * d + 1}], v[{SC + 2 * d}:{SC + 2 * d + 1}], v[{ZS + 2 * d}:{ZS + 2 * d + 1}] neg_lo:[0,0,1] neg_hi:[0,0,1]")
    a(f"v_cvt_pk_bf16_f32 v{q}, v{q}, v{q + 1}")
    a(f"v_cvt_pk_bf16_f32 v{q + 1}, v{q + 2}, v{q + 3}")
    a(f"ds_write_b64 v{WA + ((i >> 2) & 1)}, v[{q}:{q + 1}] offset:{128 * i}")
for s in range(4):
    for c in range(2):
        d = FB + 8 * s + 4 * c
        a(f"ds_read_b64_tr_b16 {vr(d, 2)}, v{RA + c} offset:{2048 * s}")
        a(f"ds_read_b64_tr_b16 {vr(d + 2, 2)}, v{RA + c} offset:{2048 * s + 256}")
stamp(2)
a(f"s_mov_b32 s{S_SPIN}, {OPT['spin']}")
a("L_p2_poll:")
a("s_waitcnt vmcnt(0)")
a(f"v_readlane_b32 s{S_TAG}, v5, 63")
a("s_nop 1")
a(f"v_cmp_ne_u32 vcc, s{S_TAG}, v5")
a(f"s_cmp_eq_u32 s{S_TAG}, 0")
a("s_cbranch_scc1 L_p2_more")
a("s_cbranch_vccz L_p2_go")
a("L_p2_more:")
spin_check("L_p2_go")
sleep()
a(f"global_load_dword v5, v[{PA}:{PA + 1}], off sc1")
a("s_branch L_p2_poll")
a("L_p2_go:")
stamp(13)
for s in range(4):
    a(f"s_mov_b32 s{S_T0}, {s * 4096}")
    for mt in range(4):
        o = f" offset:{mt * 1024}" if mt else ""
        a(f"buffer_load_dwordx4 {vr(XB + 16 * s + 4 * mt, 4)}, v7, {S(R_WS)}, s{S_T0} offen{o} sc1")
v_dma(VB1)
a("s_waitcnt lgkmcnt(0)")
dbg_issue(S_R2, 128)
for s in range(4):
    a(f"s_waitcnt vmcnt({4 * (3 - s) + VB1})")
    for mt in range(4):
        for c in range(2):
            acc = vr(AC + 8 * mt + 4 * c, 4)
            cin = "0" if s == 0 else acc
            a(f"v_mfma_f32_16x16x32_bf16 {acc}, {vr(FB + 8 * s + 4 * c, 4)}, {vr(XB + 16 * s + 4 * mt, 4)}, {cin}")
stamp(3)
a(f"s_lshl_b32 s{S_T0}, s{S_W}, 13")
a(f"s_add_u32 s{S_T0}, s{S_T0}, {LDS_RED}")
a(f"v_lshl_add_u32 v4, v{V_L}, 4, s{S_T0}")
a("s_nop 4")
for i in range(8):
    a(f"ds_write_b128 v4, {vr(AC + 4 * i, 4)} offset:{i * 1024}")
r2_finish()
a("s_barrier")
stamp(11)
a(f"s_cmp_ge_u32 s{S_W}, 4")
a("s_cbranch_scc1 L_p2_bar2")
a(f"s_lshl_b32 s{S_T0}, s{S_W}, 11")
a(f"s_add_u32 s{S_T0}, s{S_T0}, {LDS_RED}")
a(f"v_lshl_add_u32 v4, v{V_L}, 4, s{S_T0}")
for w in range(8):
    a(f"ds_read_b128 {vr(16 + 8 * w, 4)}, v4 offset:{w * 8192}")
    a(f"ds_read_b128 {vr(20 + 8 * w, 4)}, v4 offset:{w * 8192 + 1024}")
a(f"s_lshl_b32 s{S_T0}, s{S_KS}, 12")
a(f"s_lshl_b32 s{S_T1}, s{S_W}, 10")
a(f"s_add_u32 s{S_T0}, s{S_T0}, s{S_T1}")
a(f"s_add_u32 s{S_T0}, s{S_T0}, {WS_H}")
a(f"v_lshlrev_b32 v5, 4, v{V_L}")
for w in range(1, 8):
    a(f"s_waitcnt lgkmcnt({min(15, 2 * (7 - w))})")
    for i in range(0, 8, 2):
        a(f"v_pk_add_f32 v[{16 + i}:{17 + i}], v[{16 + i}:{17 + i}], v[{16 + 8 * w + i}:{17 + 8 * w + i}]")
for r in range(4):
    a(f"v_cvt_pk_bf16_f32 v{8 + r}, v{16 + 2 * r}, v{17 + 2 * r}")
for r in range(4):
    a(f"v_min_u32 v{8 + r}, 0xfffffffe, v{8 + r}")
a(f"buffer_store_dwordx4 v[8:11], v5, {S(R_WS)}, s{S_T0} offen sc1")
a("L_p2_bar2:")
a("s_barrier")
stamp(4)
publish_xcc()
v_dma(14 - VB0 - VB1, OPT["vwin_a"])

a("L_p3_wait:")
VA = 8
HB, AC, PB = 16, 72, 88
NPRE = OPT["npre"]
assert PB + 4 * NPRE <= 248
stamp(5)
a(f"s_lshr_b32 s{S_T0}, s{S_W}, 2")
a(f"s_mul_i32 s{S_T1}, s{S_KS3}, {28 * 4096}")
a(f"s_mul_i32 s{S_T2}, s{S_T0}, {14 * 4096}")
a(f"s_add_u32 s{S_T1}, s{S_T1}, s{S_T2}")
a(f"s_and_b32 s{S_T2}, s{S_W}, 3")
a(f"s_lshl_b32 s{S_T2}, s{S_T2}, 10")
a(f"s_add_u32 s{S_T1}, s{S_T1}, s{S_T2}")
a(f"s_add_u32 s{S_T1}, s{S_T1}, {WS_H}")
a(f"v_min_u32 v4, 13, v{V_L}")
a(f"v_lshl_add_u32 v253, v4, 12, s{S_T1}")
a(f"v_lshl_add_u32 v255, v{V_L}, 4, s{S_T1}")
a(f"buffer_load_dword v4, v253, {S(R_WS)}, 0 offen sc1")
if OPT["touch"]:
    a(f"s_lshl_b32 s{S_T1}, s{S_NT3}, 16")
    a(f"s_lshl_b32 s{S_T2}, s{S_KS3}, 14")
    a(f"s_add_u32 s{S_T1}, s{S_T1}, s{S_T2}")
    a(f"s_lshl_b32 s{S_T2}, s{S_W}, 11")
    a(f"s_add_u32 s{S_T1}, s{S_T1}, s{S_T2}")
    a(f"s_add_u32 s{S_T1}, s{S_T1}, {WS_PART}")
    a(f"v_lshlrev_b32 v5, 7, v{V_M}")
    a(f"buffer_load_dword v{V_PF}, v5, {S(R_WS)}, s{S_T1} offen sc1")
a(f"v_bfe_u32 v5, v{V_L}, 3, 2")
a(f"v_lshrrev_b32 v6, 2, v{V_L}")
a("v_lshlrev_b32 v6, 7, v6")
a(f"v_and_b32 v7, 3, v{V_L}")
a("v_lshl_add_u32 v6, v7, 3, v6")
a(f"s_mul_i32 s{S_T1}, s{S_T0}, {448 * 128}")
a(f"v_add_u32 v6, s{S_T1}, v6")
for tt in range(4):
    a(f"v_xor_b32 v7, {tt}, v5")
    a(f"v_lshl_add_u32 v{VA + tt}, v7, 5, v6")
for i in range(4):
    a(f"s_bfe_u32 s{S_TAGB + i}, s{S_TAG}, {(8 << 16) | (8 * i):#x}")


def frag_read(idx, slot):
    s, tt = divmod(idx, 4)
    d = PB + 4 * slot
    a(f"ds_read_b64_tr_b16 {vr(d, 2)}, v{VA + tt} offset:{s * 4096}")
    a(f"ds_read_b64_tr_b16 {vr(d + 2, 2)}, v{VA + tt} offset:{s * 4096 + 2048}")


def h_loads():
    for s in range(14):
        a(f"s_mov_b32 s{S_SO + (s & 3)}, {s * 4096}")
        a(f"buffer_load_dwordx4 {vr(HB + 4 * s, 4)}, v255, {S(R_WS)}, s{S_SO + (s & 3)} offen sc1")


a(f"s_mov_b32 s{S_SPIN}, {OPT['spin']}")
a(f"s_waitcnt vmcnt({1 if OPT['touch'] else 0})")
a("v_cmp_eq_u32 vcc, -1, v4")
a(f"s_mov_b32 s{S_HAVE}, 0")
a("s_cbranch_vccnz L_p3_notyet")
h_loads()
a(f"s_mov_b32 s{S_HAVE}, 1")
a("L_p3_notyet:")
a("s_barrier")
stamp(6)
for idx in range(NPRE):
    frag_read(idx, idx)
a(f"s_cmp_lg_u32 s{S_HAVE}, 0")
a("s_cbranch_scc1 L_p3_loaded")
a("L_p3_poll:")
a(f"buffer_load_dword v4, v253, {S(R_WS)}, 0 offen sc1")
a("s_waitcnt vmcnt(0)")
a("v_cmp_eq_u32 vcc, -1, v4")
a("s_cbranch_vccz L_p3_again")
spin_check("L_p3_again")
sleep()
a("s_branch L_p3_poll")
a("L_p3_again:")
stamp(7)
h_loads()
a("L_p3_loaded:")
if OPT["local"]:
    a(f"s_and_b32 s{S_T0}, s{S_I}, 28")
    a(f"s_lshr_b32 s{S_T1}, s{S_W}, 2")
    a(f"s_lshl_b32 s{S_T1}, s{S_T1}, 1")
    a(f"s_add_u32 s{S_T0}, s{S_T0}, s{S_T1}")
    a(f"s_lshl_b32 s{S_T0}, s{S_T0}, 3")
    a(f"s_add_u32 s{S_T0}, s{S_T0}, s{S_X}")
    a(f"s_lshl_b32 s{S_T0}, s{S_T0}, 7")
    a(f"s_add_u32 s{S_T0}, s{S_T0}, {WS_XCC}")
    a(f"s_add_u32 s{S_T1}, s{S_T0}, 1024")
    a(f"s_load_dword s50, s[20:21], s{S_T0}")
    a(f"s_load_dword s51, s[20:21], s{S_T1}")
a("s_waitcnt lgkmcnt(0)")
late = list(range(NPRE, 56))
LAG = 4
for idx in range(56):
    s, tt = divmod(idx, 4)
    if tt == 0:
        a(f"s_waitcnt vmcnt({13 - s})")
    if idx >= NPRE:
        rem = 56 - 1 - idx
        a(f"s_waitcnt lgkmcnt({min(15, 2 * rem)})")
    acc = vr(AC + 4 * tt, 4)
    cin = "0" if s == 0 else acc
    a(f"v_mfma_f32_16x16x32_bf16 {acc}, {vr(PB + 4 * (idx % NPRE), 4)}, {vr(HB + 4 * s, 4)}, {cin}")
    if tt == 1:
        regs = list(range(HB + 4 * s, HB + 4 * s + 4))
        if s:
            regs = [5] + regs
        max_chain(5, regs)
    j = idx - LAG
    if 0 <= j < len(late):
        frag_read(late[j], j)
a("v_cmp_eq_u32 vcc, -1, v5")
a("s_cbranch_vccz L_p3_ok")
spin_check("L_p3_ok")
for idx in range(len(late)):
    frag_read(idx, idx)
a("s_branch L_p3_again")
a("L_p3_ok:")
stamp(8)
KEEP, GIVE, IN = 16, 24, 32
a(f"s_lshl_b32 s{S_T0}, s{S_W}, 11")
a(f"s_add_u32 s{S_T0}, s{S_T0}, {LDS_X}")
a(f"v_lshl_add_u32 v4, v{V_L}, 4, s{S_T0}")
a(f"s_xor_b32 s{S_T0}, s{S_T0}, 8192")
a(f"v_lshl_add_u32 v6, v{V_L}, 4, s{S_T0}")
a(f"s_cmp_ge_u32 s{S_W}, 4")
a("s_cbranch_scc1 L_x_hi")
a("s_nop 1")
a(f"ds_write_b128 v4, {vr(AC + 8, 4)}")
a(f"ds_write_b128 v4, {vr(AC + 12, 4)} offset:1024")
for r in range(8):
    a(f"v_mov_b32 v{KEEP + r}, v{AC + r}")
a("s_branch L_x_join")
a("L_x_hi:")
a("s_nop 1")
a(f"ds_write_b128 v4, {vr(AC, 4)}")
a(f"ds_write_b128 v4, {vr(AC + 4, 4)} offset:1024")
for r in range(8):
    a(f"v_mov_b32 v{KEEP + r}, v{AC + 8 + r}")
a("L_x_join:")
a(f"s_lshl_b32 s{S_T0}, s{S_NT3}, 16")
a(f"s_add_u32 s{S_T0}, s{S_T0}, {WS_PART}")
a(f"s_and_b32 s{S_T1}, s{S_W}, 3")
a(f"s_lshl_b32 s{S_T1}, s{S_T1}, 12")
a(f"s_add_u32 s{S_T0}, s{S_T0}, s{S_T1}")
a(f"v_lshl_add_u32 v7, v{V_L}, 4, s{S_T0}")
a(f"s_lshr_b32 s{S_T2}, s{S_W}, 2")
a(f"s_lshl_b32 s{S_T2}, s{S_T2}, 1")
a(f"s_lshl_b32 s{S_T0}, s{S_T2}, 14")
a(f"s_lshl_b32 s{S_T1}, s{S_KS3}, 10")
a(f"s_add_u32 s{S_T0}, s{S_T0}, s{S_T1}")
a(f"s_add_u32 s{S_T1}, s{S_T0}, 16384")
a("v_mov_b32 v12, 0xffffff00")
a("s_waitcnt lgkmcnt(0)")
a("s_barrier")
a(f"ds_read_b128 {vr(GIVE, 4)}, v6")
a(f"ds_read_b128 {vr(GIVE + 4, 4)}, v6 offset:1024")
if OPT["local"]:
    a(f"s_getreg_b32 s{S_T3}, hwreg(HW_REG_XCC_ID, 0, 4)")
    a(f"s_add_u32 s49, s{S_T3}, s{S_TAG}")
a(f"s_sub_u32 s{S_T3}, s{S_KS3}, s{S_T2}")
a("s_waitcnt lgkmcnt(0)")
for i in range(0, 8, 2):
    a(f"v_pk_add_f32 v[{KEEP + i}:{KEEP + i + 1}], v[{KEEP + i}:{KEEP + i + 1}], v[{GIVE + i}:{GIVE + i + 1}]")
for h in range(2):
    l_skip, l_loc = a.label("xs"), a.label("xl")
    a(f"s_cmp_eq_u32 s{S_T3}, {h}")
    a(f"s_cbranch_scc1 {l_skip}")
    for r in range(4):
        a(f"v_and_or_b32 v{GIVE + 4 * h + r}, v{KEEP + 4 * h + r}, v12, s{S_TAGB + r}")
    so = S_T0 if h == 0 else S_T1
    if OPT["local"]:
        a(f"s_cmp_eq_u32 s{50 + h}, s49")
        a(f"s_cbranch_scc1 {l_loc}")
    a(f"buffer_store_dwordx4 {vr(GIVE + 4 * h, 4)}, v7, {S(R_WS)}, s{so} offen sc1")
    if OPT["local"]:
        a(f"s_branch {l_skip}")
        a(f"{l_loc}:")
        a(f"buffer_store_dwordx4 {vr(GIVE + 4 * h, 4)}, v7, {S(R_WS)}, s{so} offen")
    a(f"{l_skip}:")
stamp(12)
a(f"s_cmp_gt_u32 s{S_T3}, 1")
a("s_cbranch_scc1 L_fin")
a(f"s_cmp_eq_u32 s{S_T3}, 0")
a("s_cbranch_scc1 L_own0")
for r in range(4):
    a(f"v_mov_b32 v{KEEP + r}, v{KEEP + 4 + r}")
a("L_own0:")
a(f"s_lshl_b32 s{S_T0}, s{S_KS3}, 14")
for q in range(1, 4):
    a(f"s_add_u32 s{S_T1}, s{S_KS3}, {q}")
    a(f"s_and_b32 s{S_T1}, s{S_T1}, 3")
    a(f"s_lshl_b32 s{S_T1}, s{S_T1}, 10")
    a(f"s_add_u32 s{S_SO + q - 1}, s{S_T0}, s{S_T1}")
srd(a, R_A, 16, SZ_OUT)
a(f"s_and_b32 s{S_T0}, s{S_W}, 3")
a(f"s_mul_i32 s{S_T0}, s{S_T0}, {16 * 7168}")
a(f"s_lshl_b32 s{S_T1}, s{S_NT3}, 7")
a(f"s_add_u32 s{S_T0}, s{S_T0}, s{S_T1}")
a(f"s_lshl_b32 s{S_T1}, s{S_KS3}, 5")
a(f"s_add_u32 s{S_T0}, s{S_T0}, s{S_T1}")
a(f"v_mul_u32_u24 v6, 7168, v{V_M}")
a(f"v_lshl_add_u32 v6, v{V_G}, 3, v6")
a(f"v_add_u32 v6, s{S_T0}, v6")
a(f"s_mov_b32 s{S_SPIN}, {OPT['spin']}")
a("L_p4_poll:")
for q in range(3):
    a(f"buffer_load_dwordx4 {vr(IN + 4 * q, 4)}, v7, {S(R_WS)}, s{S_SO + q} offen sc1")
for q in range(3):
    a(f"s_waitcnt vmcnt({2 - q})")
    for r in range(4):
        a(f"v_xor_b32 v{IN + 4 * q + r}, s{S_TAGB + r}, v{IN + 4 * q + r}")
    if q == 0:
        a(f"v_or3_b32 v5, v{IN}, v{IN + 1}, v{IN + 2}")
        a(f"v_or_b32 v5, v5, v{IN + 3}")
    else:
        a(f"v_or3_b32 v5, v5, v{IN + 4 * q}, v{IN + 4 * q + 1}")
        a(f"v_or3_b32 v5, v5, v{IN + 4 * q + 2}, v{IN + 4 * q + 3}")
a("v_and_b32 v5, 0xff, v5")
a("v_cmp_ne_u32 vcc, 0, v5")
a("s_cbranch_vccz L_p4_ok")
spin_check("L_p4_ok")
sleep()
a("s_branch L_p4_poll")
a("L_p4_ok:")
stamp(9)
for i in range(0, 4, 2):
    a(f"v_pk_add_f32 v[{KEEP + i}:{KEEP + i + 1}], v[{KEEP + i}:{KEEP + i + 1}], v[{IN + i}:{IN + i + 1}]")
    a(f"v_pk_add_f32 v[{IN + 4 + i}:{IN + 5 + i}], v[{IN + 4 + i}:{IN + 5 + i}], v[{IN + 8 + i}:{IN + 9 + i}]")
for i in range(0, 4, 2):
    a(f"v_pk_add_f32 v[{KEEP + i}:{KEEP + i + 1}], v[{KEEP + i}:{KEEP + i + 1}], v[{IN + 4 + i}:{IN + 5 + i}]")
a(f"v_cvt_pk_bf16_f32 v8, v{KEEP}, v{KEEP + 1}")
a(f"v_cvt_pk_bf16_f32 v9, v{KEEP + 2}, v{KEEP + 3}")
osc = " sc1" if OPT["out_sc1"] else ""
a(f"buffer_store_dwordx2 v[8:9], v6, {S(R_A)}, 0 offen{osc}")
a("L_fin:")
if OPT["pad"]:
    a("L_pad:")
    a("s_memrealtime s[98:99]")
    a("s_waitcnt lgkmcnt(0)")
    a("s_sub_u32 s98, s98, s78")
    a(f"s_cmp_lt_u32 s98, {OPT['pad']}")
    a("s_cbranch_scc1 L_pad")
if STAMP:
    a("s_waitcnt vmcnt(0)")
    stamp(10)
    if STAMP == 2:
        a(f"s_cmp_ge_u32 s{S_I}, 28")
        a("s_cbranch_scc1 L_end")
        a(f"s_and_b32 s{S_T0}, s{S_W}, 3")
        a(f"s_cmp_lg_u32 s{S_T0}, 3")
        a("s_cbranch_scc1 L_end")
        a("s_sleep 127")
        a("s_sleep 127")
        a("s_sleep 127")
        a("s_sleep 127")
        a("s_mov_b64 exec, 1")
        a(f"s_not_b32 s{S_ST + 15}, s{S_ST}")
        a(f"s_cmp_lt_u32 s{S_I}, 14")
        a(f"s_cselect_b32 s{S_T0}, 8, 36")
        a(f"v_mov_b32 v4, s{S_T0}")
        a(f"v_mov_b32 v5, 4")
        a(f"v_mov_b32 v8, s{S_ST + 15}")
        a(f"buffer_atomic_umax v8, v5, {S(R_DBG)}, 0 offen sc1")
        for n, k in enumerate([0, 2, 3, 4, 6, 8, 10]):
            a(f"v_mov_b32 v{9 + n}, s{S_ST + k}")
            a(f"buffer_atomic_umax v{9 + n}, v4, {S(R_DBG)}, 0 offen offset:{4 * n} sc1")
        a("s_branch L_end")
    a("s_mov_b64 exec, 1")
    a(f"s_lshl_b32 s{S_T0}, s2, 9")
    a(f"s_lshl_b32 s{S_T1}, s{S_W}, 6")
    a(f"s_add_u32 s{S_T0}, s{S_T0}, s{S_T1}")
    a(f"s_add_u32 s{S_T0}, s{S_T0}, {WS_STAMP}")
    a(f"v_mov_b32 v4, s{S_T0}")
    for q in range(4):
        for r in range(4):
            a(f"v_mov_b32 v{8 + 4 * q + r}, s{S_ST + 4 * q + r}")
        a(f"buffer_store_dwordx4 {vr(8 + 4 * q, 4)}, v4, {S(R_WS)}, 0 offen offset:{16 * q}")
a("L_end:")
a("s_endpgm")

a('.section .rodata,"a"')
kernel_desc(a, K, 256, 102)
out = sys.argv[1] if len(sys.argv) > 1 and sys.argv[1] != "-" else f"cdna_kernels/{NAME}.s"
open(out, "w").write(a.text())
print("wrote", out)
```
